```python
import torch

def _softmax(x, axis=-1):
    return torch.softmax(x, dim=axis)
def _gelu(x):
    return torch.nn.functional.gelu(x, approximate="tanh")
def _silu(x):
    return torch.nn.functional.silu(x)
def _sigmoid(x):
    return torch.sigmoid(x)
def _layernorm(x, axis=-1, eps=1e-5):
    m = x.mean(dim=axis, keepdim=True)
    v = x.var(dim=axis, keepdim=True, unbiased=False)
    return (x - m) / torch.sqrt(v + eps)
def _scatter_add(tgt, idx, src, axis=0):
    return tgt.clone().index_add_(axis, idx, src)
def _segment_sum(src, seg, n):
    out = torch.zeros((n,) + src.shape[1:], dtype=src.dtype)
    return out.index_add_(0, seg, src)
def _pad(x, pw):
    flat = tuple(v for pair in reversed(pw) for v in pair)
    return torch.nn.functional.pad(x, flat)

kernel_name = 'parallel_sum__linear_attn_block__dense_activation_silu__prompt'

def setup_inputs():

    _w = (lambda a: (lambda t: t.to(torch.bfloat16) if t.is_floating_point() else t)(torch.as_tensor(a)))
    def _A_setup():
        B, S, D = 1, 2048, 640
        return {
            "x": _w((lambda *s: torch.randn(*s, dtype=torch.bfloat16) * 0.05)(B, S, D)),
            "wqkv": _w((lambda *s: torch.randn(*s, dtype=torch.bfloat16) * 0.1)(D, 3 * D)),
            "wo": _w((lambda *s: torch.randn(*s, dtype=torch.bfloat16) * 0.05)(D, D)),
        }
    _A_in = _A_setup()

    def _B_setup():
        B, S, D, F = 1, 2048, 640, 1728
        return {
            "x": _w((lambda *s: torch.randn(*s, dtype=torch.bfloat16) * 0.05)(B, S, D)),
            "w1": _w((lambda *s: torch.randn(*s, dtype=torch.bfloat16) * 0.8)(D, F) * (D ** -0.5)),
            "w2": _w((lambda *s: torch.randn(*s, dtype=torch.bfloat16) * 0.1)(F, D) * (F ** -0.5)),
        }
    _B_in = _B_setup()

    return {
        "A_x": _A_in["x"],
        "A_wqkv": _A_in["wqkv"],
        "A_wo": _A_in["wo"],
        "B_x": _B_in["x"],
        "B_w1": _B_in["w1"],
        "B_w2": _B_in["w2"],
    }

def reference(A_x, A_wqkv, A_wo, B_x, B_w1, B_w2):
    def _A_ref(x, wqkv, wo):
        B, S, D = x.shape
        H = 32; Dh = D // H
        qkv = (lambda x, *d: x.permute(*d))((x @ wqkv).reshape(B, S, 3, H, Dh), 2, 0, 3, 1, 4)
        q, k, v = qkv[0], qkv[1], qkv[2]
        phi = lambda t: torch.where(t > 0, t + 1, torch.exp(t)) + 1e-6
        pq, pk = phi(q), phi(k)
        kv = torch.einsum("bhsd,bhse->bhde", pk, v)
        z = torch.einsum("bhsd->bhd", pk)
        num = torch.einsum("bhqd,bhde->bhqe", pq, kv)
        den = torch.einsum("bhqd,bhd->bhq", pq, z)[..., None] + 1e-6
        o = num / den
        return (lambda x, *d: x.permute(*d))(o, 0, 2, 1, 3).reshape(B, S, D) @ wo

    def _B_ref(x, w1, w2):
        h = torch.einsum("bsd,df->bsf", x, w1)
        h = _silu(h)
        out = torch.einsum("bsf,fd->bsd", h, w2)
        return out

    x = A_x
    xn = _layernorm(x, axis=-1)
    return x + _A_ref(xn, A_wqkv, A_wo) + _B_ref(xn, B_w1, B_w2)
```

```python
import re

REG_RE = re.compile(r'^(-?)(?:abs\()?([vas])(?:(\d+)|\[(\d+):(\d+)\])\)?$')
TRANS = ('v_exp_f32', 'v_rcp_f32', 'v_rsq_f32', 'v_log_f32', 'v_sqrt_f32')


def regs_of(tok):
    tok = tok.strip()
    if tok == 'vcc':
        return {('s', 'vcc')}
    if tok == 'exec':
        return {('s', 'exec')}
    if tok == 'm0':
        return {('s', 'm0')}
    m = REG_RE.match(tok)
    if not m:
        return set()
    k = m.group(2)
    if m.group(3) is not None:
        return {(k, int(m.group(3)))}
    return {(k, i) for i in range(int(m.group(4)), int(m.group(5)) + 1)}


def rs(kind, lo, n=1):
    return {(kind, i) for i in range(lo, lo + n)}


def R(kind, lo, n=1):
    return f"{kind}{lo}" if n == 1 else f"{kind}[{lo}:{lo + n - 1}]"


class Ins:
    __slots__ = ('text', 'op', 'cls', 'rd', 'wr', 'srcc', 'ab', 'passes', 'states', 'data', 'wide', 'tag')

    def __init__(self, text, tag=None):
        self.text = text
        self.tag = tag
        parts = text.split(None, 1)
        op = parts[0]
        for suf in ('_e32', '_e64'):
            if op.endswith(suf):
                op = op[:-4]
        self.op = op
        rest = parts[1] if len(parts) > 1 else ''
        toks = [t.strip() for t in rest.split(',')] if rest else []
        mods = ''
        if toks:
            for i, t in enumerate(toks):
                if ' ' in t:
                    first, m = t.split(None, 1)
                    mods = m + ' ' + ','.join(toks[i + 1:])
                    toks = toks[:i] + [first]
                    break
        o = [regs_of(t) for t in toks]
        U = lambda l: set().union(*l) if l else set()
        self.rd, self.wr = set(), set()
        self.srcc, self.ab, self.data = set(), set(), set()
        self.passes, self.states, self.wide = 0, 1, False
        if op == 's_nop':
            self.cls = 'nop'
            self.states = int(toks[0]) + 1
        elif op in ('s_waitcnt', 's_barrier', 's_endpgm', 's_setprio', 's_branch', 's_sleep') or op.startswith('s_cbranch'):
            self.cls = 'ctl'
        elif op.startswith('s_load') or op in ('s_memtime', 's_memrealtime'):
            self.cls = 'smem'
            self.wr = o[0]
            self.rd = U(o[1:])
        elif op.startswith('s_cmp') or op.startswith('s_bitcmp'):
            self.cls = 'salu'
            self.rd = U(o)
        elif op.startswith('s_'):
            self.cls = 'salu'
            self.wr = set(o[0])
            self.rd = U(o[1:])
            if op in ('s_addk_i32', 's_mulk_i32'):
                self.rd |= o[0]
            if 'saveexec' in op:
                self.wr |= {('s', 'exec')}
        elif op.startswith('v_mfma'):
            self.cls = 'mfma'
            self.wr = o[0]
            self.ab = o[1] | o[2]
            self.srcc = o[3]
            self.rd = self.ab | self.srcc
            self.passes = 8 if '32x32' in op else 4
        elif op.startswith('v_'):
            self.cls = 'dot' if op.startswith('v_dot') else ('trans' if op in TRANS else 'valu')
            self.wr = set(o[0])
            self.rd = U(o[1:])
            if op.startswith('v_fmac') or op.startswith('v_dot2c'):
                self.rd |= o[0]
                self.srcc = o[0]
                self.ab = U(o[1:])
            elif op.startswith('v_dot'):
                self.srcc = o[3]
                self.ab = o[1] | o[2]
            if op.startswith('v_permlane'):
                self.wr = o[0] | o[1]
                self.rd = o[0] | o[1]
            if op.startswith('v_add_co') or op.startswith('v_addc_co'):
                self.wr = o[0] | o[1]
                self.rd = U(o[2:])
        elif op.startswith('ds_read'):
            self.cls = 'dsr'
            self.wr = o[0]
            self.rd = o[1]
        elif op.startswith('ds_write') or op.startswith('ds_add'):
            self.cls = 'dsw'
            self.rd = U(o)
        elif op.startswith('buffer_load'):
            if ' lds' in ' ' + mods:
                self.cls = 'dma'
                self.rd = U(o) | {('s', 'm0')}
            else:
                self.cls = 'vld'
                self.wr = o[0]
                self.rd = U(o[1:])
        elif op.startswith('buffer_store') or op.startswith('buffer_atomic'):
            self.cls = 'vst'
            self.rd = U(o)
            self.data = o[0]
            self.wide = op.endswith('x4') or op.endswith('x3')
        else:
            raise ValueError('unknown instruction: ' + text)


VALU = ('valu', 'trans', 'dot')
VMEM = ('vld', 'vst', 'dma')


def need_states(p, c):
    n = 0
    pv = {r for r in p.wr if r[0] in 'va'}
    ps = {r for r in p.wr if r[0] == 's'}
    if p.cls == 'mfma':
        big = p.passes == 8
        if c.cls == 'mfma':
            if pv & c.ab:
                n = max(n, 12 if big else 8)
            if pv & c.srcc:
                if not (pv == c.srcc and p.passes == c.passes and p.op == c.op):
                    n = max(n, 10 if big else 6)
            elif pv & c.wr:
                n = max(n, 12 if big else 8)
        elif c.cls in VALU or c.cls in VMEM or c.cls in ('dsr', 'dsw'):
            if pv & (c.rd | c.wr):
                n = max(n, 12 if big else 8)
            if p.srcc & c.wr:
                n = max(n, 7 if big else 3)
    elif p.cls in VALU:
        if c.cls == 'mfma' and pv & c.rd:
            n = max(n, 3 if p.cls == 'dot' else 2)
        if p.cls == 'trans' and c.cls in VALU and pv & c.rd:
            n = max(n, 1)
        if p.cls == 'dot' and pv & (c.rd | c.wr):
            if not (c.op == p.op and not (pv & c.ab)):
                n = max(n, 3)
        if c.op in ('v_readfirstlane_b32', 'v_readlane_b32') and pv & c.rd:
            n = max(n, 1)
        if c.op.startswith('v_permlane') and pv & c.rd:
            n = max(n, 2)
        if 'dpp' in c.text or 'row_' in c.text or 'quad_perm' in c.text:
            if pv & c.rd:
                n = max(n, 2)
        if ps & c.rd:
            if c.cls in VMEM:
                n = max(n, 5)
            elif c.cls in VALU or c.cls == 'mfma':
                n = max(n, 2)
            elif c.cls == 'salu':
                n = max(n, 1)
    elif p.cls == 'salu':
        if ('s', 'm0') in ps and c.cls == 'dma':
            n = max(n, 1)
    elif p.cls == 'vst' and p.wide:
        if p.data & c.wr:
            n = max(n, 2 if c.cls in VALU or c.cls == 'mfma' else 1)
    return n


class Asm:
    def __init__(self):
        self.out = []
        self.hist = []
        self.vm = []
        self.lg = []
        self.nops = 0
        self.waits = 0

    def raw(self, text):
        self.out.append(text)

    def comment(self, text):
        self.out.append('    ; ' + text)

    def label(self, name):
        self.out.append(name + ':')

    def _push(self, ins):
        self.out.append('    ' + ins.text)
        self.hist.append(ins)
        if len(self.hist) > 40:
            self.hist.pop(0)

    def _emit_wait(self, vm=None, lg=None):
        parts = []
        if vm is not None:
            vm = min(vm, 63)
            parts.append(f'vmcnt({vm})')
            if len(self.vm) > vm:
                self.vm = self.vm[len(self.vm) - vm:] if vm else []
        if lg is not None:
            if any(e[2] for e in self.lg):
                lg = 0
            lg = min(lg, 15)
            parts.append(f'lgkmcnt({lg})')
            if len(self.lg) > lg:
                self.lg = self.lg[len(self.lg) - lg:] if lg else []
        if parts:
            self._push(Ins('s_waitcnt ' + ' '.join(parts)))
            self.waits += 1

    def _cnt(self, lst, pred):
        for i in range(len(lst) - 1, -1, -1):
            if pred(lst[i]):
                return len(lst) - 1 - i
        return None

    def wait(self, regs=None, vm_tag=None, lg_tag=None, vm_all=False, lg_all=False):
        vm = lg = None
        mn = lambda a, b: b if a is None else (a if b is None else min(a, b))
        if regs:
            vm = mn(vm, self._cnt(self.vm, lambda e: e[1] & regs))
            lg = mn(lg, self._cnt(self.lg, lambda e: e[1] & regs))
        if vm_tag is not None:
            vm = mn(vm, self._cnt(self.vm, lambda e: e[0] == vm_tag))
        if lg_tag is not None:
            lg = mn(lg, self._cnt(self.lg, lambda e: e[0] == lg_tag))
        if vm_all:
            vm = 0
        if lg_all:
            lg = 0
        self._emit_wait(vm, lg)

    def __call__(self, text, tag=None):
        ins = Ins(text, tag)
        assert ins.op != 's_waitcnt', 'use wait()'
        if ins.rd or ins.wr:
            self.wait(regs=ins.rd | ins.wr)
        need, dist = 0, 0
        for p in reversed(self.hist):
            need = max(need, need_states(p, ins) - dist)
            dist += p.states
            if dist >= 20:
                break
        if need > 0:
            self._push(Ins(f's_nop {need - 1}'))
            self.nops += 1
        self._push(ins)
        if ins.cls in VMEM:
            self.vm.append((tag, set(ins.wr)))
            assert len(self.vm) <= 63, 'more than 63 vector memory ops outstanding'
        elif ins.cls in ('dsr', 'dsw'):
            self.lg.append((tag, set(ins.wr), False))
        elif ins.cls == 'smem':
            self.lg.append((tag, set(ins.wr), True))
        return ins

    def settle(self):
        need, dist = 0, 0
        for p in reversed(self.hist):
            w = {'mfma': 12, 'valu': 5, 'trans': 5, 'dot': 5, 'vst': 2, 'salu': 1}.get(p.cls, 0)
            need = max(need, w - dist)
            dist += p.states
            if dist >= 20:
                break
        if need > 0:
            self._push(Ins(f's_nop {need - 1}'))

    def snapshot(self):
        return (list(self.hist), list(self.vm), list(self.lg))

    def restore(self, snap):
        self.hist, self.vm, self.lg = list(snap[0]), list(snap[1]), list(snap[2])

    def text(self):
        return '\n'.join(self.out) + '\n'
```

```python
import sys, struct, math
from asmlib import Asm, R, rs

KNAME = 'parallel_sum__linear_attn_block__dense_activation_silu__prompt_kernel'

A2_RB = 296 * 256
WS_A2 = 0
WS_B2 = 0xA00000
WS_KVA = 0xD00000
WS_FLAG = WS_KVA + 8 * 12288
FL_S1 = WS_FLAG
FL_S2 = WS_FLAG + 1024
FL_S3 = WS_FLAG + 3072
WS_STAMP = 0xD80000
WS_SIZE = 0xE00000
OOB = 0x40000000

L_PP = 64 * 1024
L_KVL = 80 * 1024
L_XS = 96 * 1024
L_X = 96 * 1024
XP = 164 * 16
L_R = 96 * 1024

LOG2E = 1.4426950408889634
LN2 = 0.6931471805599453


def fb(x):
    return '0x%08x' % struct.unpack('<I', struct.pack('<f', x))[0]


SX, SW, SWS, SPP, SOUT, SDBG, SCODE = 4, 8, 12, 16, 20, 24, 28
SPPST, SINIT, SMARK = 52, 56, 60
sW, sMT, sC, sM2, sN2, sROLE = 64, 65, 66, 67, 68, 69
sXO, sXM, sBO, sBM = 70, 71, 72, 73
sONES, sMASK, sL2E, sLN2, sEPSP = 74, 75, 76, 77, 78
sSPIN = 79
sT = 80
sST = 98


def S(i):
    return f's{i}'


def SRD(i):
    return f's[{i}:{i + 3}]'


vLANE, vL16, vR, vC = 0, 1, 2, 3
vRD = 4
vDO = 8
vST = 13
vT = 14
vL0 = 30
vSTAMP = 31
vACC = 32
vA = 96
aRING = 0
aACC = 32
aPARK = 240


class Gen:
    def __init__(self, stamps=False, opt=None):
        self.a = Asm()
        self.stamps = stamps
        self.opt = opt or {}
        self.slow = []
        self.nspin = 0

    def stamp(self, idx):
        if not self.stamps:
            return
        a = self.a
        a(f's_memtime s[{sST}:{sST + 1}]')
        a(f'v_writelane_b32 v{vSTAMP}, s{sST}, {idx}')

    def srd(self, d, lo, nbytes):
        a = self.a
        a(f's_mov_b32 s{d}, s{lo}')
        a(f's_mov_b32 s{d + 1}, s{lo + 1}')
        a(f's_mov_b32 s{d + 2}, {nbytes}')
        a(f's_mov_b32 s{d + 3}, 0x20000')

    def poll_issue(self, vdst, n, voff, srd, soff):
        op = {1: 'buffer_load_dword', 4: 'buffer_load_dwordx4'}[n]
        txt = f'{op} {R("v", vdst, n)}, v{voff}, {SRD(srd)}, {soff} offen sc1'
        self.a(txt)
        return (txt, vdst, n)

    def poll_check(self, h):
        a = self.a
        txt, vdst, n = h
        k = self.nspin
        self.nspin += 1
        red = []
        if n == 4:
            red = [f'v_and_b32 v{vdst}, v{vdst}, v{vdst + 1}', f'v_and_b32 v{vdst + 2}, v{vdst + 2}, v{vdst + 3}',
                   f'v_and_b32 v{vdst}, v{vdst}, v{vdst + 2}']
        for t in red:
            a(t)
        a(f'v_cmp_ne_u32 vcc, 1, v{vdst}')
        a(f's_cbranch_vccnz L_spin{k}')
        a.label(f'L_back{k}')
        L = [f'L_spin{k}:', f'    s_mov_b32 s{sSPIN}, 0', f'L_spinl{k}:', '    s_nop 7', '    ' + txt, '    s_waitcnt vmcnt(0)']
        L += ['    ' + t for t in red]
        L += [f'    v_cmp_ne_u32 vcc, 1, v{vdst}', f'    s_cbranch_vccz L_back{k}',
              f'    s_add_u32 s{sSPIN}, s{sSPIN}, 1', f'    s_cmp_lt_u32 s{sSPIN}, 0x8000',
              f'    s_cbranch_scc1 L_spinl{k}', f'    s_branch L_back{k}']
        self.slow += L

    def flag_set(self, soff, vtmp):
        a = self.a
        a(f'v_mov_b32 v{vtmp}, 1')
        a(f'buffer_store_dword v{vtmp}, v{vL0}, {SRD(SWS)}, {soff} offen sc1')

    def prologue(self):
        a = self.a
        a('s_cmp_ge_u32 s2, 256')
        a('s_cbranch_scc1 L_end')
        a('s_load_dwordx16 s[32:47], s[0:1], 0')
        a('s_load_dwordx2 s[48:49], s[0:1], 64')
        if self.stamps:
            a(f'v_mov_b32 v{vSTAMP}, 0')
            a(f's_memrealtime s[{sST - 2}:{sST - 1}]')
            a(f's_memtime s[{sST}:{sST + 1}]')
        a(f's_getpc_b64 s[{SCODE}:{SCODE + 1}]')
        a.label('L_pc')
        a(f's_mov_b32 s{SCODE + 2}, L_codeend-L_pc')
        a(f's_mov_b32 s{SCODE + 3}, 0x20000')
        a(f's_lshr_b32 s{sT}, s2, 3')
        a(f's_lshl_b32 s{sT + 1}, s{sT}, 11')
        a(f'v_lshlrev_b32 v{vT}, 7, v0')
        a(f'v_cmp_gt_u32 vcc, 16, v0')
        a(f'v_mov_b32 v{vT + 1}, {OOB}')
        a(f'v_cndmask_b32 v{vT}, v{vT + 1}, v{vT}, vcc')
        a(f'buffer_load_dword v{vT + 2}, v{vT}, {SRD(SCODE)}, s{sT + 1} offen')
        a(f'v_lshrrev_b32 v{vT + 3}, 6, v0')
        a(f'v_and_b32 v{vLANE}, 63, v0')
        a(f'v_readfirstlane_b32 s{sW}, v{vT + 3}')
        a(f'v_lshlrev_b32 v{vL16}, 4, v{vLANE}')
        a(f'v_cmp_eq_u32 vcc, 0, v{vLANE}')
        a(f's_and_b32 s{sT + 2}, s2, 7')
        a(f'v_cndmask_b32 v{vL0}, v{vT + 1}, v{vLANE}, vcc')
        a(f's_and_b32 s{sT + 3}, s{sT + 2}, 1')
        a(f's_lshl_b32 s{sT + 3}, s{sT + 3}, 3')
        a(f's_and_b32 s{sMT}, s{sT}, 7')
        a(f's_add_u32 s{sMT}, s{sMT}, s{sT + 3}')
        a(f's_lshr_b32 s{sT + 3}, s{sT}, 3')
        a(f's_lshr_b32 s{sROLE}, s{sT + 3}, 1')
        a(f's_and_b32 s{sT + 3}, s{sT + 3}, 1')
        a(f's_and_b32 s{sC}, s{sT + 2}, 6')
        a(f's_add_u32 s{sC}, s{sC}, s{sT + 3}')
        a(f's_lshl_b32 s{sM2}, s{sT + 2}, 2')
        a(f's_and_b32 s{sT + 3}, s{sT}, 3')
        a(f's_add_u32 s{sM2}, s{sM2}, s{sT + 3}')
        a(f's_lshr_b32 s{sN2}, s{sT}, 2')
        a(f's_mov_b32 s{sONES}, 0x3f803f80')
        a(f's_mov_b32 s{sMASK}, 0xffff0000')
        a(f's_mov_b32 s{sL2E}, {fb(LOG2E)}')
        a(f's_mov_b32 s{sLN2}, {fb(LN2)}')
        a(f's_mov_b32 s{sEPSP}, {fb(1e-6 * LOG2E)}')
        J, KS, LC = sT + 4, sT + 5, sT + 6
        a(f's_lshl_b32 s{J}, s{sMT}, 3')
        a(f's_add_u32 s{J}, s{J}, s{sC}')
        a(f's_lshl_b32 s{J}, s{J}, 2')
        a(f's_add_u32 s{J}, s{J}, s{sW}')
        a(f's_xor_b32 s{sT + 3}, s{sROLE}, 1')
        a(f's_lshl_b32 s{sT + 3}, s{sT + 3}, 9')
        a(f's_add_u32 s{J}, s{J}, s{sT + 3}')
        a(f's_mul_i32 s{KS}, s{J}, 6554')
        a(f's_lshr_b32 s{KS}, s{KS}, 16')
        a(f's_mul_i32 s{LC}, s{KS}, 10')
        a(f's_sub_u32 s{LC}, s{J}, s{LC}')
        xo = vACC
        a(f'v_lshrrev_b32 v{vT + 3}, 3, v{vLANE}')
        a(f'v_lshrrev_b32 v{vT + 4}, 4, v{vLANE}')
        a(f'v_and_b32 v{vT + 5}, 7, v{vLANE}')
        a(f'v_xor_b32 v{vT + 6}, v{vT + 5}, v{vT + 4}')
        a(f'v_lshlrev_b32 v{vT + 6}, 4, v{vT + 6}')
        a(f's_movk_i32 s{sT + 3}, 1280')
        a(f'v_mad_u32_u24 v{xo}, v{vT + 3}, s{sT + 3}, v{vT + 6}')
        a(f'v_xor_b32 v{xo + 1}, 64, v{xo}')
        a(f'v_add_u32 v{xo + 2}, {2 * 9216}, v{xo}')
        a(f'v_add_u32 v{xo + 3}, {3 * 9216}, v{xo + 1}')
        a(f'v_add_u32 v{xo + 1}, 9216, v{xo + 1}')
        a(f's_lshl_b32 s{sXO}, s{sMT}, 2')
        a(f's_add_u32 s{sXO}, s{sXO}, s{sW}')
        a(f's_mul_i32 s{sXO}, s{sXO}, {32 * 1280}')
        a(f's_lshl_b32 s{sXM}, s{sW}, 12')
        po = vACC + 4
        i_, p16 = vT + 3, vT + 5
        a(f'v_lshlrev_b32 v{p16}, 4, v{p16}')
        a(f's_cmp_lt_u32 s{KS}, 54')
        a('s_cbranch_scc0 L_pp_wo')
        snap = a.snapshot()
        a(f'v_and_b32 v{vT + 6}, 4, v{i_}')
        a(f'v_add_u32 v{vT + 6}, v{vT + 6}, v{i_}')
        a(f's_lshl_b32 s{sT + 7}, s{KS}, 5')
        for kg in range(4):
            a(f's_add_u32 s{sT + 8}, s{sT + 7}, {16 * (kg >> 1) + 4 * (kg & 1)}')
            a(f'v_add_u32 v{po + kg}, s{sT + 8}, v{vT + 6}')
        a.settle()
        a('s_branch L_pp_join')
        a.label('L_pp_wo')
        a.restore(snap)
        for kg in range(4):
            cid, cc, rem = sT + 7, sT + 8, sT + 9
            a(f's_lshl_b32 s{cid}, s{KS}, 2')
            a(f's_sub_u32 s{cid}, s{cid}, {216 - kg}')
            a(f's_mul_i32 s{cc}, s{cid}, 6554')
            a(f's_lshr_b32 s{cc}, s{cc}, 16')
            a(f's_mul_i32 s{rem}, s{cc}, 10')
            a(f's_sub_u32 s{rem}, s{cid}, s{rem}')
            a(f's_mul_i32 s{cc}, s{cc}, 80')
            a(f's_and_b32 s{cid}, s{rem}, 1')
            a(f's_mul_i32 s{cid}, s{cid}, 10')
            a(f's_add_u32 s{cc}, s{cc}, s{cid}')
            a(f's_lshr_b32 s{rem}, s{rem}, 1')
            a(f's_lshl_b32 s{rem}, s{rem}, 3')
            a(f'v_add_u32 v{vT + 6}, s{rem}, v{i_}')
            a(f'v_mul_u32_u24 v{vT + 7}, 26, v{vT + 6}')
            a(f'v_lshrrev_b32 v{vT + 7}, 8, v{vT + 7}')
            a(f'v_mad_u32_u24 v{vT + 6}, v{vT + 7}, 10, v{vT + 6}')
            a(f'v_add_u32 v{po + kg}, s{cc}, v{vT + 6}')
        a.settle()
        a.label('L_pp_join')
        for kg in range(4):
            a(f'v_mad_u32_u24 v{po + kg}, v{po + kg}, s{sT + 3}, v{p16}')
        a.wait(lg_all=True)
        if self.stamps:
            a(f'v_writelane_b32 v{vSTAMP}, s{sST - 2}, 0')
            a(f'v_writelane_b32 v{vSTAMP}, s{sST}, 1')
        self.srd(SX, 32, 2048 * 1280)
        self.srd(SWS, 48, WS_SIZE)
        self.srd(SINIT, 48, WS_SIZE)
        self.srd(SMARK, 46, 256)
        a('s_cmp_lt_u32 s2, 9')
        a(f's_cselect_b32 s{SINIT + 2}, s{SINIT + 2}, 0')
        a(f's_cselect_b32 s{SMARK + 2}, s{SMARK + 2}, 0')
        z = vT + 8
        for i in range(4):
            a(f'v_mov_b32 v{z + i}, 0')
        a(f's_mul_i32 s{sT + 7}, s2, 12288')
        a(f's_mul_i32 s{sT + 8}, s{sW}, 3072')
        a(f's_add_u32 s{sT + 7}, s{sT + 7}, s{sT + 8}')
        a(f's_add_u32 s{sT + 7}, s{sT + 7}, {WS_KVA}')
        for i in range(3):
            a(f'buffer_store_dwordx4 v[{z}:{z + 3}], v{vL16}, {SRD(SINIT)}, s{sT + 7} offen offset:{i * 1024} sc1')
        a(f's_mov_b32 s{sT + 7}, {640 * 1280}')
        a(f's_cmp_lt_u32 s{KS}, 54')
        a(f's_cselect_b32 s{SPP}, s42, s36')
        a(f's_cselect_b32 s{SPP + 1}, s43, s37')
        a(f's_cselect_b32 s{SPP + 2}, {1728 * 1280}, s{sT + 7}')
        a(f's_mov_b32 s{SPP + 3}, 0x20000')
        self.srd(SPPST, 48, WS_SIZE)
        a(f's_cmp_lt_u32 s{J}, 740')
        a(f's_cselect_b32 s{SPP + 2}, s{SPP + 2}, 0')
        a(f's_cselect_b32 s{SPPST + 2}, s{SPPST + 2}, 0')
        a(f's_lshl_b32 s{sT + 7}, s{LC}, 7')
        for kg in range(4):
            a(f's_add_u32 m0, s{sXM}, {L_PP + kg * 1024}')
            a(f'buffer_load_dwordx4 v{po + kg}, {SRD(SPP)}, s{sT + 7} offen lds', tag='pp')
        a(f's_add_u32 s{sXM}, s{sXM}, {L_XS}')
        for j in range(4):
            self.x_dma(j)
        self.srd(SOUT, 44, 2048 * 1280)
        self.srd(SDBG, 46, 256)
        xr = vACC + 8
        a(f'v_and_b32 v{vT + 3}, 31, v{vLANE}')
        a(f'v_lshrrev_b32 v{vT + 4}, 5, v{vLANE}')
        a(f'v_bfe_u32 v{vT + 5}, v{vLANE}, 1, 3')
        a(f'v_xor_b32 v{vT + 5}, v{vT + 5}, v{vT + 4}')
        a(f'v_lshlrev_b32 v{vT + 5}, 4, v{vT + 5}')
        a(f'v_lshl_add_u32 v{vT + 5}, v{vT + 3}, 7, v{vT + 5}')
        for q in range(4):
            a(f'v_xor_b32 v{xr + q}, {32 * q}, v{vT + 5}')
            a(f'v_add_u32 v{xr + q}, s{sXM}, v{xr + q}')
        a(f'v_bfe_u32 v{vT + 5}, v{vLANE}, 4, 1')
        a(f's_mov_b32 s{sT + 8}, {A2_RB}')
        a(f'v_mul_lo_u32 v{vT + 5}, v{vT + 5}, s{sT + 8}')
        a(f'v_and_b32 v{vT + 6}, 15, v{vLANE}')
        a(f'v_lshl_add_u32 v{vT + 5}, v{vT + 6}, 4, v{vT + 5}')
        a(f'v_lshl_add_u32 v{vST}, v{vT + 4}, 8, v{vT + 5}')
        a(f'v_lshrrev_b32 v{vT + 3}, 4, v{vLANE}')
        a(f'v_bfe_u32 v{vT + 4}, v{vLANE}, 2, 2')
        a(f'v_lshl_add_u32 v{vT + 3}, v{vT + 3}, 3, v{vT + 4}')
        a(f'v_and_b32 v{vT + 4}, 3, v{vLANE}')
        a(f'v_lshlrev_b32 v{vT + 4}, 3, v{vT + 4}')
        a(f'v_lshl_add_u32 v{vT + 3}, v{vT + 3}, 7, v{vT + 4}')
        a(f's_sub_u32 s{sT + 8}, s{sXM}, {L_XS - L_PP}')
        a(f'v_add_u32 v{vT + 3}, s{sT + 8}, v{vT + 3}')
        a(f's_mul_i32 s{sT + 8}, s{KS}, 40960')
        a(f's_lshl_b32 s{sT + 7}, s{LC}, 12')
        a(f's_add_u32 s{sT + 7}, s{sT + 7}, s{sT + 8}')
        a(f's_add_u32 s{sT + 7}, s{sT + 7}, {WS_B2}')
        a(f's_lshl_b32 s{sT + 8}, s2, 2')
        a(f's_add_u32 s{sT + 8}, s{sT + 8}, s{sW}')
        a(f's_lshl_b32 s{sT + 8}, s{sT + 8}, 2')
        a(f'v_mov_b32 v{vT + 4}, 1')
        a.wait(vm_tag='pp')
        a(f'buffer_store_dword v{vT + 4}, v{vL0}, {SRD(SMARK)}, s{sT + 8} offen sc1')
        pf = vACC + 16
        for cb in range(4):
            for ii in range(2):
                a(f'ds_read_b64_tr_b16 v[{pf + 4 * cb + 2 * ii}:{pf + 4 * cb + 2 * ii + 1}], v{vT + 3} offset:{ii * 512 + cb * 32}')
        for cb in range(4):
            a(f'buffer_store_dwordx4 v[{pf + 4 * cb}:{pf + 4 * cb + 3}], v{vL16}, {SRD(SPPST)}, s{sT + 7} offen offset:{cb * 1024} sc1')
        self.stamp(2)
        a(f's_cmp_eq_u32 s{sROLE}, 0')
        a('s_cbranch_scc1 L_attn')

    def x_dma(self, j):
        a = self.a
        a(f's_add_u32 m0, s{sXM}, {(j % 4) * 16384}')
        if j:
            a(f's_add_u32 s{sXO}, s{sXO}, 128')
        for i in range(4):
            a(f'buffer_load_dwordx4 v{vACC + i}, {SRD(SX)}, s{sXO} offen offset:{i * 1024} lds', tag=f'x{j}')

    def x_phase(self, bdma):
        a = self.a
        xr = vACC + 8
        s1a, s1b, s2a, s2b = vACC + 12, vACC + 13, vACC + 14, vACC + 15
        for r in (s1a, s1b, s2a, s2b):
            a(f'v_mov_b32 v{r}, 0')
        a(f'v_min_u32 v{vT + 12}, 35, v{vLANE}')
        a(f'v_lshlrev_b32 v{vT + 12}, 2, v{vT + 12}')
        h0 = None
        for j in range(10):
            a.wait(vm_tag=f'x{j}')
            for q in range(4):
                d = vA + 16 * j + 4 * q
                a(f'ds_read_b128 v[{d}:{d + 3}], v{xr + q} offset:{(j % 4) * 16384}')
            a.wait(lg_all=True)
            if j + 4 < 10:
                self.x_dma(j + 4)
            elif j == 6:
                h0 = self.poll_issue(vT + 13, 1, vT + 12, SDBG, '0')
                for t in bdma(0):
                    t()
            elif j == 7:
                for t in bdma(1):
                    t()
            for t in range(16):
                d = vA + 16 * j + t
                a(f'v_dot2c_f32_bf16 v{(s1a, s1b)[t & 1]}, s{sONES}, v{d}')
                a(f'v_dot2c_f32_bf16 v{(s2a, s2b)[t & 1]}, v{d}, v{d}')
        a(f'v_add_f32 v{s1a}, v{s1a}, v{s1b}')
        a(f'v_add_f32 v{s2a}, v{s2a}, v{s2b}')
        a(f'v_mov_b32 v{s1b}, v{s1a}')
        a(f'v_mov_b32 v{s2b}, v{s2a}')
        a(f'v_permlane32_swap_b32 v{s1a}, v{s1b}')
        a(f'v_permlane32_swap_b32 v{s2a}, v{s2b}')
        a(f'v_add_f32 v{s1a}, v{s1a}, v{s1b}')
        a(f'v_add_f32 v{s2a}, v{s2a}, v{s2b}')
        a(f'v_mul_f32 v{s1a}, {fb(1.0 / 640)}, v{s1a}')
        a(f'v_mul_f32 v{s2a}, {fb(1.0 / 640)}, v{s2a}')
        a(f'v_fma_f32 v{s2a}, -v{s1a}, v{s1a}, v{s2a}')
        a(f'v_max_f32 v{s2a}, 0, v{s2a}')
        a(f'v_add_f32 v{s2a}, {fb(1e-5)}, v{s2a}')
        a(f'v_rsq_f32 v{vR}, v{s2a}')
        a(f'v_mul_f32 v{vR}, s{sL2E}, v{vR}')
        a(f'v_mul_f32_e64 v{vC}, -v{s1a}, v{vR}')
        self.poll_check(h0)
        for t in self.ln_ops(0):
            a(t)
        self.stamp(3)

    def ln_ops(self, ks):
        ops = []
        for i in range(4):
            d = vA + 4 * ks + i
            ta, tb = vT + 2 * (i & 1), vT + 2 * (i & 1) + 1
            ops += [f'v_lshlrev_b32 v{ta}, 16, v{d}', f'v_and_b32 v{tb}, s{sMASK}, v{d}',
                    f'v_fma_f32 v{ta}, v{ta}, v{vR}, v{vC}', f'v_fma_f32 v{tb}, v{tb}, v{vR}, v{vC}',
                    f'v_cvt_pk_bf16_f32 v{d}, v{ta}, v{tb}']
        return ops

    def gemm_stream(self, passes, LA, bdma, nchunks, after_first_barrier, between):
        a = self.a
        M = []
        for pi, p in enumerate(passes):
            for ks in range(40):
                for b in range(p['nb']):
                    M.append((pi, ks, b))
        frag = lambda m: aRING + 4 * (m % 8)
        pend = []

        def boundary(m):
            pi, ks, b = M[m]
            p = passes[pi]
            return b == 0 and ks % p['spc'] == 0

        def reads(m):
            pi, ks, b = M[m]
            p = passes[pi]
            g = p['g0'] + ks // p['spc']
            if boundary(m):
                while pend:
                    pend.pop(0)()
                a.wait(vm_tag=f'b{g}')
                a('s_barrier')
                if g == 0:
                    after_first_barrier()
                if g + 2 < nchunks:
                    pend.extend(bdma(g + 2))
            for ii in range(2):
                reg, imm = p['addr'](ks % p['spc'], b, ii, g % 4)
                a(f'ds_read_b64_tr_b16 a[{frag(m) + 2 * ii}:{frag(m) + 2 * ii + 1}], v{reg} offset:{imm}')

        for m in range(LA):
            reads(m)
        m = 0
        for pi, p in enumerate(passes):
            nb = p['nb']
            for ks in range(40):
                fill = list(p['fill'](ks))
                need = set()
                for b in range(nb):
                    need |= rs('a', frag(m + b), 4)
                a.wait(regs=need)
                ndma = min(len(pend), p.get('dps', 1))
                cost = [16 + (16 if b < ndma else 0) + (8 if m + b + LA < len(M) and boundary(m + b + LA) else 0) for b in range(nb)]
                cost[nb - 1] += 4
                cnt = [0] * nb
                for _ in fill:
                    g = min(range(nb), key=lambda i: cost[i])
                    cost[g] += 4
                    cnt[g] += 1
                for b in range(nb):
                    acc = p['acc'](b)
                    xa, wa = R('v', vA + 4 * ks, 4), R('a', frag(m), 4)
                    o1, o2 = (xa, wa) if p['xfirst'] else (wa, xa)
                    a(f'v_mfma_f32_32x32x16_bf16 {acc}, {o1}, {o2}, {acc if ks else 0}')
                    if b < ndma and pend:
                        pend.pop(0)()
                    for _ in range(cnt[b]):
                        t = fill.pop(0)
                        t() if callable(t) else a(t)
                    if m + LA < len(M):
                        reads(m + LA)
                    m += 1
            between(pi, pend)

    def s1_flag(self):
        a = self.a
        a(f's_lshl_b32 s{sT}, s2, 2')
        a(f's_add_u32 s{sT}, s{sT}, {FL_S1}')
        a(f's_cmp_eq_u32 s{sW}, 0')
        a(f's_cselect_b32 s{sT}, s{sT}, {OOB}')
        self.flag_set(f's{sT}', vT + 4)

    def s3_flag(self, stage):
        a = self.a
        a(f's_mul_i32 s{sT}, s{sMT}, 384')
        a(f's_lshr_b32 s{sT + 1}, s{sW}, 1')
        a(f's_lshl_b32 s{sT + 1}, s{sT + 1}, 6')
        a(f's_add_u32 s{sT}, s{sT}, s{sT + 1}')
        a(f's_lshl_b32 s{sT + 1}, s{sC}, 3')
        a(f's_add_u32 s{sT}, s{sT}, s{sT + 1}')
        a(f's_and_b32 s{sT + 1}, s{sW}, 1')
        a(f's_lshl_b32 s{sT + 1}, s{sT + 1}, 2')
        a(f's_add_u32 s{sT}, s{sT}, s{sT + 1}')
        a(f's_add_u32 s{sT}, s{sT}, {FL_S3 + stage * 128}')
        a.wait(vm_tag='a2st')
        self.flag_set(f's{sT}', vT + 4)

    def a2_base(self, sd, chunk_mul, chunk_add):
        a = self.a
        a(f's_lshl_b32 s{sd}, s{sMT}, 2')
        a(f's_add_u32 s{sd}, s{sd}, s{sW}')
        a(f's_mul_i32 s{sd}, s{sd}, {2 * A2_RB}')
        a(f's_mul_i32 s{sT + 15}, s{sC}, {chunk_mul * 256}')
        a(f's_add_u32 s{sd}, s{sd}, s{sT + 15}')
        if chunk_add:
            a(f's_add_u32 s{sd}, s{sd}, {WS_A2 + chunk_add * 256}')

    def frag_lane(self, pitch, dst):
        a = self.a
        a(f'v_lshrrev_b32 v{vT}, 5, v{vLANE}')
        a(f'v_bfe_u32 v{vT + 1}, v{vLANE}, 2, 2')
        a(f'v_lshl_add_u32 v{vT}, v{vT}, 3, v{vT + 1}')
        a(f'v_mul_u32_u24 v{vT}, {pitch}, v{vT}')
        a(f'v_bfe_u32 v{vT + 2}, v{vLANE}, 4, 1')
        a(f'v_lshl_add_u32 v{vT}, v{vT + 2}, 5, v{vT}')
        a(f'v_and_b32 v{vT + 2}, 3, v{vLANE}')
        a(f'v_lshl_add_u32 v{dst}, v{vT + 2}, 3, v{vT}')

    def silu_block(self, kind, base, soff, imm0):
        a = self.a
        for j in range(2):
            t, e, pk = vT, vT + 8, vT + 8
            src = []
            for i in range(8):
                if kind == 'a':
                    a(f'v_accvgpr_read_b32 v{t + i}, a{base + 8 * j + i}')
                    src.append(t + i)
                else:
                    src.append(base + 8 * j + i)
            for i in range(8):
                a(f'v_exp_f32_e64 v{e + i}, -v{src[i]}')
            for i in range(8):
                a(f'v_fma_f32 v{e + i}, v{e + i}, s{sL2E}, s{sL2E}')
            for i in range(8):
                a(f'v_rcp_f32 v{e + i}, v{e + i}')
            for i in range(8):
                a(f'v_mul_f32 v{src[i]}, v{src[i]}, v{e + i}')
            for i in range(4):
                a(f'v_cvt_pk_bf16_f32 v{pk + i}, v{src[2 * i]}, v{src[2 * i + 1]}')
            a(f'buffer_store_dwordx4 v[{pk}:{pk + 3}], v{vST}, {SRD(SWS)}, {soff} offen offset:{imm0 + j * 512} sc1', tag='a2st')

    def role_h(self):
        a = self.a
        self.srd(SW, 40, 640 * 3456)
        a(f'v_lshrrev_b32 v{vT}, 4, v{vLANE}')
        a(f'v_lshlrev_b32 v{vT + 1}, 2, v{vT}')
        a(f'v_and_b32 v{vT + 2}, 15, v{vLANE}')
        a(f'v_xor_b32 v{vT + 1}, v{vT + 1}, v{vT + 2}')
        a(f'v_lshlrev_b32 v{vT + 1}, 4, v{vT + 1}')
        a(f's_lshl_b32 s{sT}, s{sW}, 4')
        a(f'v_add_u32 v{vT}, s{sT}, v{vT}')
        a(f's_movk_i32 s{sT + 1}, 3456')
        a(f'v_mad_u32_u24 v{vDO}, v{vT}, s{sT + 1}, v{vT + 1}')
        for i in range(1, 4):
            a(f'v_add_u32 v{vDO + i}, {i * (4 * 3456 - 1024)}, v{vDO}')
        for i in range(3):
            a(f'v_add_u32 v{vT}, {64 * i}, v{vLANE}')
            a(f'v_mul_u32_u24 v{vT + 1}, 171, v{vT}')
            a(f'v_lshrrev_b32 v{vT + 1}, 11, v{vT + 1}')
            a(f'v_mul_u32_u24 v{vT + 2}, 12, v{vT + 1}')
            a(f'v_sub_u32 v{vT}, v{vT}, v{vT + 2}')
            a(f'v_lshlrev_b32 v{vT}, 4, v{vT}')
            a(f'v_add_u32 v{vT + 1}, s{sT}, v{vT + 1}')
            a(f'v_mad_u32_u24 v{vT}, v{vT + 1}, s{sT + 1}, v{vT}')
            if i:
                a(f'v_subrev_u32 v{vT}, {1024 * i}, v{vT}')
            a(f'v_accvgpr_write_b32 a{aPARK + i}, v{vT}')
        self.frag_lane(192, vDO + 4)
        self.frag_lane(256, vT + 3)
        for q in range(4):
            a(f'v_xor_b32 v{vT + 2}, {q}, v{vT + 1}')
            a(f'v_lshl_add_u32 v{vRD + q}, v{vT + 2}, 6, v{vT + 3}')
        a(f's_lshl_b32 s{sBO}, s{sC}, 8')
        a(f's_lshl_b32 s{sBM}, s{sW}, 12')

        def bdma(g):
            n = 4 if g < 10 else 3
            out = []
            for i in range(n):
                def f(i=i):
                    if i == 0:
                        if g == 10:
                            for k in range(3):
                                a(f'v_accvgpr_read_b32 v{vDO + k}, a{aPARK + k}')
                            a(f's_mul_i32 s{sBO}, s{sC}, 192')
                            a(f's_add_u32 s{sBO}, s{sBO}, 2048')
                            a(f's_mul_i32 s{sBM}, s{sW}, 3072')
                        a(f's_add_u32 m0, s{sBM}, {(g % 4) * 16384}')
                        if g not in (0, 10):
                            a(f's_add_u32 s{sBO}, s{sBO}, {64 * 3456}')
                    a(f'buffer_load_dwordx4 v{vDO + i}, {SRD(SW)}, s{sBO} offen offset:{i * 1024} lds', tag=f'b{g}')
                out.append(f)
            return out

        self.x_phase(bdma)
        p1 = dict(nb=4, spc=4, g0=0, xfirst=False, acc=lambda b: R('v', vACC + 16 * b, 16),
                  addr=lambda s, b, ii, slot: (vRD + b, slot * 16384 + s * 4096 + ii * 1024),
                  fill=lambda ks: self.ln_ops(ks + 1) if ks < 39 else [])
        p2 = dict(nb=3, spc=4, g0=10, xfirst=False, acc=lambda b: R('a', aACC + 16 * b, 16),
                  addr=lambda s, b, ii, slot: (vDO + 4, slot * 16384 + s * 3072 + ii * 768 + b * 64),
                  fill=lambda ks: [])

        def between(pi, pend):
            while pend:
                pend.pop(0)()
            self.stamp(4 + 2 * pi)
            if pi == 0:
                self.a2_base(sT + 2, 16, 0)
                for b in range(4):
                    self.silu_block('v', vACC + 16 * b, f's{sT + 2}', b * 1024)
                self.s3_flag(0)
            else:
                self.a2_base(sT + 2, 12, 128)
                a(f's_cmp_eq_u32 s{sC}, 7')
                a(f's_cselect_b32 s{sT + 3}, {OOB}, s{sT + 2}')
                for b in range(3):
                    self.silu_block('a', aACC + 16 * b, f's{sT + 2 + (1 if b else 0)}', b * 1024)
                self.s3_flag(1)
            self.stamp(5 + 2 * pi)

        self.gemm_stream([p1, p2], 6, bdma, 20, self.s1_flag, between)

    def phi8(self, src, sel=None):
        a = self.a
        e = vT + 8
        for i in range(8):
            a(f'v_exp_f32_e64 v{e + i}, v{src[i]} clamp')
        if sel is None:
            for i in range(8):
                a(f'v_max_f32 v{src[i]}, s{sEPSP}, v{src[i]}')
            for i in range(8):
                a(f'v_fma_f32 v{src[i]}, v{src[i]}, s{sLN2}, v{e + i}')
        else:
            for i in range(8):
                a(f'v_max_f32 v{vT + i}, s{sEPSP}, v{src[i]}')
            for i in range(8):
                a(f'v_fma_f32 v{vT + i}, v{vT + i}, s{sLN2}, v{e + i}')
            for i in range(8):
                a(f'v_cndmask_b32 v{src[i]}, v{src[i]}, v{vT + i}, {sel}')

    def role_attn(self):
        a = self.a
        self.srd(SW, 34, 640 * 3840)
        a(f's_lshl_b32 s{sT}, s{sW}, 4')
        a(f's_movk_i32 s{sT + 1}, 3840')
        for i in range(5):
            imm = 1024 * i if i < 4 else 0
            a(f'v_add_u32 v{vT}, {64 * i}, v{vLANE}')
            a(f'v_mul_u32_u24 v{vT + 1}, 205, v{vT}')
            a(f'v_lshrrev_b32 v{vT + 1}, 12, v{vT + 1}')
            a(f'v_mul_u32_u24 v{vT + 2}, 20, v{vT + 1}')
            a(f'v_sub_u32 v{vT}, v{vT}, v{vT + 2}')
            a(f'v_cmp_le_u32 vcc, 10, v{vT}')
            a(f'v_lshlrev_b32 v{vT}, 4, v{vT}')
            a(f'v_add_u32 v{vT + 1}, s{sT}, v{vT + 1}')
            a(f'v_mad_u32_u24 v{vT}, v{vT + 1}, s{sT + 1}, v{vT}')
            if imm:
                a(f'v_subrev_u32 v{vT}, {imm}, v{vT}')
            a(f'v_add_u32 v{vT + 1}, 1120, v{vT}')
            a(f'v_add_u32 v{vT + 2}, {64 * 3840 - 160}, v{vT}')
            a(f'v_cndmask_b32 v{vDO + i}, v{vT}, v{vT + 1}, vcc')
            a(f'v_cndmask_b32 v{vT + 2}, v{vT}, v{vT + 2}, vcc')
            a(f'v_accvgpr_write_b32 a{aPARK + i}, v{vT + 2}')
        self.frag_lane(320, vRD)
        a(f'v_add_u32 v{vRD + 1}, 40960, v{vRD}')
        a(f's_mul_i32 s{sBO}, s{sC}, 160')
        a(f's_add_u32 s{sBO}, s{sBO}, 1280')
        a(f's_mul_i32 s{sBM}, s{sW}, 5120')

        def bdma(g):
            out = []
            for i in range(5):
                def f(i=i):
                    if i == 0:
                        if g == 10:
                            for k in range(5):
                                a(f'v_accvgpr_read_b32 v{vDO + k}, a{aPARK + k}')
                            a(f's_mul_i32 s{sBO}, s{sC}, 160')
                        a(f's_add_u32 m0, s{sBM}, {(g % 4) * 20480}')
                        if g not in (0, 10):
                            a(f's_add_u32 s{sBO}, s{sBO}, {(64 if g < 10 else 128) * 3840}')
                    if i == 4:
                        a(f's_add_u32 m0, s{sBM}, {(g % 4) * 20480 + 4096}')
                    a(f'buffer_load_dwordx4 v{vDO + i}, {SRD(SW)}, s{sBO} offen offset:{(i % 4) * 1024} lds', tag=f'b{g}')
                out.append(f)
            return out

        self.x_phase(bdma)
        kvacc = lambda b: R('v', vACC + 16 * b, 16) if b < 4 else R('a', aACC + 48, 16)
        p1 = dict(nb=5, spc=4, g0=0, xfirst=True, acc=kvacc, dps=2,
                  addr=lambda s, b, ii, slot: (vRD + (slot >> 1), (slot & 1) * 20480 + s * 5120 + ii * 1280 + b * 64),
                  fill=lambda ks: self.ln_ops(ks + 1) if ks < 39 else [])
        p2 = dict(nb=3, spc=8, g0=10, xfirst=False, acc=lambda b: R('a', aACC + 16 * b, 16),
                  addr=lambda s, b, ii, slot: (vRD + (slot >> 1), (slot & 1) * 20480 + (s & 3) * 5120 + (s >> 2) * 160 + ii * 1280 + b * 64),
                  fill=lambda ks: [])

        def kv_epilogue():
            wa, ka, va = vRD + 2, vRD + 3, vR
            a(f'v_lshrrev_b32 v{vT}, 5, v{vLANE}')
            a(f'v_and_b32 v{vT + 1}, 31, v{vLANE}')
            a(f'v_mul_u32_u24 v{vT}, {XP}, v{vT}')
            a(f'v_lshl_add_u32 v{vT + 2}, v{vT + 1}, 4, v{vT}')
            a(f's_mul_i32 s{sT}, s{sW}, {4 * XP}')
            a(f's_add_u32 s{sT}, s{sT}, {L_X}')
            a(f'v_add_u32 v{wa}, s{sT}, v{vT + 2}')
            a(f's_mul_i32 s{sT + 1}, s{sW}, 320')
            a(f's_add_u32 s{sT + 1}, s{sT + 1}, {L_X}')
            a(f'v_add_u32 v{ka}, s{sT + 1}, v{vT + 2}')
            a(f'v_add_u32 v{va}, 1280, v{ka}')
            a(f'v_add_u32 v{vT + 3}, {L_X + 2560}, v{vT}')
            a(f'v_cmp_gt_u32 vcc, 20, v{vT + 1}')
            a(f'v_cndmask_b32 v{va}, v{vT + 3}, v{va}, vcc')
            a(f'v_and_b32 v{vT + 3}, 3, v{vLANE}')
            a(f'v_mul_u32_u24 v{vT + 3}, {XP}, v{vT + 3}')
            a(f'v_add_u32 v{vT + 3}, s{sT}, v{vT + 3}')
            for i in range(4):
                a(f'v_mov_b32 v{vT + 4 + i}, s{sONES}')
            a(f'ds_write_b128 v{vT + 3}, v[{vT + 4}:{vT + 7}] offset:2560')
            a(f'v_cmp_gt_u32 s[{sT + 2}:{sT + 3}], 16, v{vT + 1}')
            for b in range(5):
                for j in range(2):
                    if b < 4:
                        src = [vACC + 16 * b + 8 * j + i for i in range(8)]
                    else:
                        src = [vT + i for i in range(8)]
                        for i in range(8):
                            a(f'v_accvgpr_read_b32 v{src[i]}, a{aACC + 48 + 8 * j + i}')
                    if b < 2:
                        self.phi8(src)
                    elif b == 2:
                        self.phi8(src, f's[{sT + 2}:{sT + 3}]')
                    pk = vT + 8 + 4 * j
                    for i in range(4):
                        a(f'v_cvt_pk_bf16_f32 v{pk + i}, v{src[2 * i]}, v{src[2 * i + 1]}')
                    a(f'ds_write_b128 v{wa}, v[{pk}:{pk + 3}] offset:{j * 2 * XP + b * 512}')
            a.wait(lg_all=True)
            a('s_barrier')
            fr = vACC + 16
            D = R('v', vACC, 16)
            for t in range(8):
                f = fr + 8 * (t % 6)
                a(f'ds_read_b128 v[{f}:{f + 3}], v{va} offset:{t * 2 * XP}')
                a(f'ds_read_b128 v[{f + 4}:{f + 7}], v{ka} offset:{t * 2 * XP}')
                if t >= 5:
                    u = t - 5
                    g = fr + 8 * (u % 6)
                    a(f'v_mfma_f32_32x32x16_bf16 {D}, v[{g}:{g + 3}], v[{g + 4}:{g + 7}], {D if u else 0}')
            for u in range(3, 8):
                g = fr + 8 * (u % 6)
                a(f'v_mfma_f32_32x32x16_bf16 {D}, v[{g}:{g + 3}], v[{g + 4}:{g + 7}], {D}')
            a(f'v_lshrrev_b32 v{vT}, 5, v{vLANE}')
            a(f'v_and_b32 v{vT + 1}, 31, v{vLANE}')
            a(f'v_lshlrev_b32 v{vT + 2}, 2, v{vT + 1}')
            a(f'v_lshl_add_u32 v{vT + 2}, v{vT}, 9, v{vT + 2}')
            a(f'v_mov_b32 v{vT + 3}, {OOB}')
            a(f'v_cmp_gt_u32 vcc, 20, v{vT + 1}')
            a(f'v_cndmask_b32 v{vT + 2}, v{vT + 3}, v{vT + 2}, vcc')
            a(f'v_cmp_gt_u32 vcc, 20, v{vLANE}')
            a(f'v_cndmask_b32 v{vT + 3}, v{vT + 3}, v{vT + 2}, vcc')
            a(f's_lshl_b32 s{sT}, s{sC}, 2')
            a(f's_add_u32 s{sT}, s{sT}, s{sW}')
            a(f's_mul_i32 s{sT}, s{sT}, 3072')
            a(f's_add_u32 s{sT}, s{sT}, {WS_KVA}')
            for r in range(12):
                a(f'buffer_atomic_add_f32 v{vACC + r}, v{vT + (2 if r < 9 else 3)}, {SRD(SWS)}, s{sT} offen offset:{(8 * (r >> 2) + (r & 3)) * 128}', tag='kva')
            a(f's_lshl_b32 s{sT}, s{sC}, 4')
            a(f's_add_u32 s{sT}, s{sT}, s{sMT}')
            a(f's_lshl_b32 s{sT}, s{sT}, 2')
            a(f's_add_u32 s{sT}, s{sT}, s{sW}')
            a(f's_lshl_b32 s{sT}, s{sT}, 2')
            a(f's_add_u32 s{sT}, s{sT}, {FL_S2}')
            a.wait(vm_tag='kva')
            self.flag_set(f's{sT}', vT + 4)

        def q_epilogue():
            pq = vA
            a(f'v_lshlrev_b32 v{vR}, 2, v{vLANE}')
            a(f's_lshl_b32 s{sT + 4}, s{sC}, 8')
            a(f's_add_u32 s{sT + 4}, s{sT + 4}, {FL_S2}')
            h = self.poll_issue(vC, 1, vR, SWS, f's{sT + 4}')
            for g in range(5):
                src = [vT + i for i in range(8)]
                for i in range(8):
                    a(f'v_accvgpr_read_b32 v{src[i]}, a{aACC + 8 * g + i}')
                self.phi8(src)
                for i in range(4):
                    a(f'v_cvt_pk_bf16_f32 v{pq + 4 * g + i}, v{src[2 * i]}, v{src[2 * i + 1]}')
            self.poll_check(h)
            self.stamp(8)
            kf = vA + 32
            a(f's_mul_i32 s{sT}, s{sC}, 12288')
            a(f's_lshl_b32 s{sT + 1}, s{sW}, 10')
            a(f's_add_u32 s{sT}, s{sT}, s{sT + 1}')
            a(f's_add_u32 s{sT}, s{sT}, {WS_KVA}')
            for i in range(3):
                a(f'buffer_load_dwordx4 v[{kf + 4 * i}:{kf + 4 * i + 3}], v{vL16}, {SRD(SWS)}, s{sT} offen sc1')
                if i < 2:
                    a(f's_add_u32 s{sT}, s{sT}, 4096')
            a(f's_lshl_b32 s{sT + 1}, s{sW}, 9')
            a(f's_add_u32 s{sT + 1}, s{sT + 1}, {L_KVL}')
            a(f'v_lshl_add_u32 v{vT}, v{vLANE}, 3, s{sT + 1}')
            a(f'v_bfe_u32 v{vT + 1}, v{vLANE}, 3, 2')
            a(f'v_and_b32 v{vT + 2}, 3, v{vLANE}')
            a(f'v_lshl_add_u32 v{vT + 1}, v{vT + 1}, 2, v{vT + 2}')
            a(f'v_bfe_u32 v{vT + 2}, v{vLANE}, 2, 1')
            a(f'v_mad_u32_u24 v{vT + 2}, v{vT + 2}, 10, v{vT + 1}')
            a(f'v_cmp_gt_u32 vcc, 10, v{vT + 1}')
            a(f'v_cndmask_b32 v{vT + 2}, 20, v{vT + 2}, vcc')
            a(f'v_lshlrev_b32 v{vT + 2}, 6, v{vT + 2}')
            a(f'v_lshrrev_b32 v{vT + 1}, 5, v{vLANE}')
            a(f'v_lshl_add_u32 v{vT + 2}, v{vT + 1}, 3, v{vT + 2}')
            a(f'v_add_u32 v{vT + 2}, {L_KVL}, v{vT + 2}')
            for i in range(3):
                f = kf + 4 * i
                a(f'v_cvt_pk_bf16_f32 v{f}, v{f}, v{f + 1}')
                a(f'v_cvt_pk_bf16_f32 v{f + 1}, v{f + 2}, v{f + 3}')
                a(f'ds_write_b64 v{vT}, v[{f}:{f + 1}] offset:{i * 2048}')
            a.wait(lg_all=True)
            a('s_barrier')
            ko = vA + 48
            for hd in range(4):
                for u in range(3):
                    f = ko + 6 * hd + 2 * u
                    a(f'ds_read_b64 v[{f}:{f + 1}], v{vT + 2} offset:{hd * 1536 + u * 16 - (8 if hd & 1 else 0)}')
            win = [0, 4, 10, 14]
            for hd in range(4):
                D = R('v', vACC + 16 * hd, 16)
                a(f'v_mfma_f32_32x32x16_bf16 {D}, v[{ko + 6 * hd}:{ko + 6 * hd + 3}], v[{pq + win[hd]}:{pq + win[hd] + 3}], 0')
            for hd in range(4):
                D = R('v', vACC + 16 * hd, 16)
                a(f'v_mfma_f32_32x32x8_bf16 {D}, v[{ko + 6 * hd + 4}:{ko + 6 * hd + 5}], v[{pq + win[hd] + 4}:{pq + win[hd] + 5}], {D}')
            self.a2_base(sT + 2, 10, 216)
            a(f'v_mov_b32 v{vT + 4}, s{sEPSP}')
            ob = vA + 80
            for hd in range(4):
                d = vACC + 16 * hd
                a(f'v_fma_f32 v{d + 10}, v{d + 10}, s{sL2E}, v{vT + 4}')
                a(f'v_rcp_f32 v{d + 10}, v{d + 10}')
                for i in range(10):
                    a(f'v_mul_f32 v{d + i}, v{d + i}, v{d + 10}')
                for i in range(5):
                    a(f'v_cvt_pk_bf16_f32 v{ob + 5 * hd + i}, v{d + 2 * i}, v{d + 2 * i + 1}')
            for t in range(5):
                a(f'buffer_store_dwordx4 v[{ob + 4 * t}:{ob + 4 * t + 3}], v{vST}, {SRD(SWS)}, s{sT + 2} offen offset:{t * 512} sc1', tag='a2st')
            self.s3_flag(2)

        def between(pi, pend):
            while pend:
                pend.pop(0)()
            self.stamp(4 + 2 * pi)
            if pi == 0:
                kv_epilogue()
            else:
                q_epilogue()
            self.stamp(5 + 2 * pi)

        self.gemm_stream([p1, p2], 7, bdma, 15, self.s1_flag, between)

    def phase2(self):
        a = self.a
        vAO, vFL, vFT, vX = 2, 6, 8, 12
        acc0, ab0, bv0 = 32, 112, 176
        acc = lambda rho, cb: R('v', acc0 + 20 * rho + 4 * cb, 4)
        abuf = lambda i, rho: ab0 + 16 * (i % 4) + 4 * rho

        def breg(i, cb):
            if i < 12:
                return ('a', 20 * i + 4 * cb)
            if i < 16:
                return ('v', bv0 + 20 * (i - 12) + 4 * cb)
            return ('a', 20 * (i - 16) + 4 * cb)
        sKE, sKM, sKL, sBB, sAB, sB, sFL = sT, sT + 1, sT + 2, sT + 3, sT + 4, sT + 9, sT + 11
        a(f's_mov_b32 s{sT + 12}, {FL_S1}')
        h1 = self.poll_issue(vFT, 4, vL16, SWS, f's{sT + 12}')
        a(f's_lshl_b32 s{sKE}, s{sW}, 3')
        a(f's_mul_i32 s{sKM}, s{sW}, 6')
        a(f's_add_u32 s{sKM}, s{sKM}, 32')
        a(f's_mul_i32 s{sKL}, s{sW}, 5')
        a(f's_add_u32 s{sKL}, s{sKL}, 54')
        a(f's_mul_i32 s{sBB}, s{sN2}, 5120')
        a(f's_add_u32 s{sBB}, s{sBB}, {WS_B2}')
        kreg = lambda i: (sKE, i) if i < 8 else ((sKM, i - 8) if i < 14 else (sKL, i - 14))
        grp = {0: 0, 4: 1, 8: 2, 12: 3, 14: 4}
        for st, g in grp.items():
            kr, o = kreg(st)
            a(f's_add_u32 s{sAB + g}, s{kr}, {o}')
            a(f's_lshl_b32 s{sAB + g}, s{sAB + g}, 10')
        a(f's_cmp_eq_u32 s{sW}, 3')
        a(f's_cselect_b32 s{sAB + 3}, {OOB}, s{sAB + 3}')
        for rho in range(4):
            a(f's_add_u32 s{sT + 13}, s{sW}, {rho + 1}')
            a(f's_and_b32 s{sT + 13}, s{sT + 13}, 3')
            a(f's_lshl_b32 s{sT + 14}, s{sM2}, 2')
            a(f's_add_u32 s{sT + 13}, s{sT + 13}, s{sT + 14}')
            a(f's_mul_i32 s{sT + 13}, s{sT + 13}, {A2_RB}')
            a(f'v_add_u32 v{vAO + rho}, s{sT + 13}, v{vL16}')
        a(f'v_and_b32 v{vFL}, 15, v{vLANE}')
        a(f'v_lshlrev_b32 v{vFL}, 2, v{vFL}')
        a(f's_lshr_b32 s{sFL}, s{sM2}, 1')
        a(f's_mul_i32 s{sFL}, s{sFL}, 384')
        a(f's_and_b32 s{sT + 13}, s{sM2}, 1')
        a(f's_lshl_b32 s{sT + 13}, s{sT + 13}, 6')
        a(f's_add_u32 s{sFL}, s{sFL}, s{sT + 13}')
        a(f's_add_u32 s{sFL}, s{sFL}, {FL_S3}')
        self.poll_check(h1)
        self.stamp(9)

        def bload(i):
            out = []
            for cb in range(5):
                def f(cb=cb):
                    if cb == 0:
                        kr, o = kreg(i)
                        a(f's_add_u32 s{sB}, s{kr}, {o}')
                        a(f's_mul_i32 s{sB}, s{sB}, 40960')
                        a(f's_add_u32 s{sB}, s{sB}, s{sBB}')
                        if i in (12, 13):
                            a(f's_cmp_eq_u32 s{sW}, 3')
                            a(f's_cselect_b32 s{sB}, {OOB}, s{sB}')
                        a(f's_add_u32 s{sB + 1}, s{sB}, 4096')
                    k, r = breg(i, cb)
                    a(f'buffer_load_dwordx4 {R(k, r, 4)}, v{vL16}, {SRD(SWS)}, s{sB + (cb >> 2)} offen offset:{(cb & 3) * 1024} sc1')
                out.append(f)
            return out

        def aload(i, rho):
            if i == 18 and rho == 0:
                a(f's_add_u32 s{sAB + 4}, s{sAB + 4}, 4096')
            st = max(s for s in grp if s <= i)
            a(f'buffer_load_dwordx4 {R("v", abuf(i, rho), 4)}, v{vAO + rho}, {SRD(SWS)}, s{sAB + grp[st]} offen offset:{((i - st) & 3) * 1024} sc1')

        for i in range(12):
            for t in bload(i):
                t()
        h = self.poll_issue(vFT, 1, vFL, SWS, f's{sFL}')
        self.poll_check(h)
        self.stamp(10)
        for i in range(4):
            for rho in range(4):
                aload(i, rho)
        a(f'v_and_b32 v{vFT + 1}, 15, v{vLANE}')
        a(f'v_lshrrev_b32 v{vFT + 2}, 4, v{vLANE}')
        a(f'v_mul_u32_u24 v{vFT + 1}, 1280, v{vFT + 1}')
        a(f'v_lshl_add_u32 v7, v{vFT + 2}, 3, v{vFT + 1}')
        a(f's_lshl_b32 s{sT + 13}, s{sM2}, 2')
        a(f's_add_u32 s{sT + 13}, s{sT + 13}, s{sW}')
        a(f's_mul_i32 s{sT + 13}, s{sT + 13}, {16 * 1280}')
        a(f's_mul_i32 s{sT + 14}, s{sN2}, 160')
        a(f's_add_u32 s{sT + 13}, s{sT + 13}, s{sT + 14}')
        hp = None
        for i in range(19):
            pend = []
            if i < 4:
                pend = bload(12 + i)
            elif 4 <= i < 7:
                pend = bload(12 + i)
            if i in (3, 9):
                a(f's_add_u32 s{sFL}, s{sFL}, 128')
                hp = self.poll_issue(vFT, 1, vFL, SWS, f's{sFL}')
            if i in (4, 10):
                self.poll_check(hp)
                self.stamp(11 if i == 4 else 12)
            if i == 15:
                for cb in range(5):
                    a(f'buffer_load_dwordx2 v[{vX + 2 * cb}:{vX + 2 * cb + 1}], v7, {SRD(SX)}, s{sT + 13} offen offset:{cb * 32}')
            for rho in range(4):
                for cb in range(5):
                    k, r = breg(i, cb)
                    a(f'v_mfma_f32_16x16x32_bf16 {acc(rho, cb)}, {R(k, r, 4)}, {R("v", abuf(i, rho), 4)}, {acc(rho, cb) if i else 0}')
                    if cb in (1, 3) and pend:
                        pend.pop(0)()
                if i + 4 < 19:
                    aload(i + 4, rho)
        self.stamp(13)
        for rho in range(3):
            a(f's_add_u32 s{sT + 14}, s{sW}, {rho + 1}')
            a(f's_and_b32 s{sT + 14}, s{sT + 14}, 3')
            a(f's_mul_i32 s{sT + 14}, s{sT + 14}, 15360')
            a(f's_add_u32 s{sT + 14}, s{sT + 14}, {L_R + rho * 5120}')
            a(f'v_add_u32 v{vAO + rho}, s{sT + 14}, v{vL16}')
            for cb in range(5):
                a(f'ds_write_b128 v{vAO + rho}, {acc(rho, cb)} offset:{cb * 1024}')
        a(f's_mul_i32 s{sT + 14}, s{sW}, 15360')
        a(f's_add_u32 s{sT + 14}, s{sT + 14}, {L_R}')
        a(f'v_add_u32 v{vAO + 3}, s{sT + 14}, v{vL16}')
        a.wait(lg_all=True)
        a('s_barrier')
        for cb in range(5):
            for rho in range(3):
                a(f'ds_read_b128 {acc(rho, cb)}, v{vAO + 3} offset:{rho * 5120 + cb * 1024}')
        for cb in range(5):
            d = acc0 + 60 + 4 * cb
            for rho in range(3):
                s_ = acc0 + 20 * rho + 4 * cb
                for i in (0, 2):
                    a(f'v_pk_add_f32 v[{d + i}:{d + i + 1}], v[{d + i}:{d + i + 1}], v[{s_ + i}:{s_ + i + 1}]')
            t = 22
            for i in range(2):
                a(f'v_lshlrev_b32 v{t + 2 * i}, 16, v{vX + 2 * cb + i}')
                a(f'v_and_b32 v{t + 2 * i + 1}, s{sMASK}, v{vX + 2 * cb + i}')
            for i in (0, 2):
                a(f'v_pk_add_f32 v[{d + i}:{d + i + 1}], v[{d + i}:{d + i + 1}], v[{t + i}:{t + i + 1}]')
            a(f'v_cvt_pk_bf16_f32 v{d}, v{d}, v{d + 1}')
            a(f'v_cvt_pk_bf16_f32 v{d + 1}, v{d + 2}, v{d + 3}')
            a(f'buffer_store_dwordx2 v[{d}:{d + 1}], v7, {SRD(SOUT)}, s{sT + 13} offen offset:{cb * 32}')
        if self.stamps:
            self.stamp(14)
            a.wait(vm_all=True)
            self.stamp(15)
            a(f's_memrealtime s[{sST}:{sST + 1}]')
            a(f'v_writelane_b32 v{vSTAMP}, s{sST}, 16')
            a(f's_lshl_b32 s{sT}, s2, 2')
            a(f's_add_u32 s{sT}, s{sT}, s{sW}')
            a(f's_lshl_b32 s{sT}, s{sT}, 8')
            a(f's_add_u32 s{sT}, s{sT}, {WS_STAMP}')
            a(f'v_lshlrev_b32 v2, 2, v{vLANE}')
            a(f'buffer_store_dword v{vSTAMP}, v2, {SRD(SWS)}, s{sT} offen')

    def build(self):
        a = self.a
        self.prologue()
        snap = a.snapshot()
        self.role_h()
        a.wait(lg_all=True)
        a.settle()
        a('s_branch L_phase2')
        a.raw('.p2align 6')
        a.label('L_attn')
        a.restore(snap)
        self.role_attn()
        a.wait(lg_all=True)
        a.settle()
        a.label('L_phase2')
        a.vm = [('old', set())]
        self.phase2()
        a.label('L_end')
        a('s_endpgm')
        for l in self.slow:
            a.raw(l)
        a.label('L_codeend')
        a.raw('    s_endpgm')
        head = f'''; LayerNorm + linear attention block + SiLU MLP + residual, one persistent launch (generated by gen/gen.py)
; @launch grid=(256,1,1) block=(256,1,1) lds=163840
.amdgcn_target "amdgcn-amd-amdhsa--gfx950"
.text
.globl {KNAME}
.p2align 8
.type {KNAME},@function
{KNAME}:
'''
        tail = f'''.section .rodata,"a"
.p2align 6
.amdhsa_kernel {KNAME}
  .amdhsa_next_free_vgpr 512
  .amdhsa_next_free_sgpr 102
  .amdhsa_accum_offset 256
  .amdhsa_group_segment_fixed_size 0
  .amdhsa_kernarg_size 72
  .amdhsa_user_sgpr_count 2
  .amdhsa_user_sgpr_kernarg_segment_ptr 1
  .amdhsa_system_sgpr_workgroup_id_x 1
  .amdhsa_float_denorm_mode_32 3
.end_amdhsa_kernel
'''
        return head + a.text() + tail


if __name__ == '__main__':
    stamps = '--stamps' in sys.argv
    out = [x for x in sys.argv[1:] if not x.startswith('--')][0]
    g = Gen(stamps)
    txt = g.build()
    open(out, 'w').write(txt)
    print(f'{out}: {len(txt)} bytes, auto nops {g.a.nops}, waits {g.a.waits}')
```

```python
import sys, struct, math
from asmlib import Asm, R, rs

KNAME = 'parallel_sum__linear_attn_block__dense_activation_silu__prompt_kernel'

A2_RB = 296 * 256
WS_A2 = 0
WS_B2 = 0xA00000
WS_KVA = 0xD00000
WS_FLAG = WS_KVA + 8 * 12288
FL_S1 = WS_FLAG
FL_S2 = WS_FLAG + 1024
FL_S3 = WS_FLAG + 3072
WS_STAMP = 0xD80000
WS_SIZE = 0xE00000
OOB = 0x40000000

L_PP = 64 * 1024
L_KVL = 80 * 1024
L_XS = 96 * 1024
L_X = 96 * 1024
XP = 164 * 16
L_R = 96 * 1024

LOG2E = 1.4426950408889634
LN2 = 0.6931471805599453


def fb(x):
    return '0x%08x' % struct.unpack('<I', struct.pack('<f', x))[0]


SX, SW, SWS, SPP, SOUT, SDBG, SCODE = 4, 8, 12, 16, 20, 24, 28
SPPST, SINIT, SMARK = 52, 56, 60
sW, sMT, sC, sM2, sN2, sROLE = 64, 65, 66, 67, 68, 69
sXO, sXM, sBO, sBM = 70, 71, 72, 73
sONES, sMASK, sL2E, sLN2, sEPSP = 74, 75, 76, 77, 78
sSPIN = 79
sT = 80
sST = 98


def S(i):
    return f's{i}'


def SRD(i):
    return f's[{i}:{i + 3}]'


vLANE, vL16, vR, vC = 0, 1, 2, 3
vRD = 4
vDO = 8
vST = 13
vT = 14
vL0 = 30
vSTAMP = 31
vACC = 32
vA = 96
aRING = 0
aACC = 32
aPARK = 240


class Gen:
    def __init__(self, stamps=False, opt=None):
        self.a = Asm()
        self.stamps = stamps
        self.opt = opt or {}
        self.slow = []
        self.nspin = 0

    def stamp(self, idx):
        a = self.a
        pr = self.opt.get('probe')
        if pr and idx == pr[1]:
            a(f's_memrealtime s[100:101]')
            a.wait(lg_all=True)
        if pr and idx == pr[0]:
            a(f's_memrealtime s[96:97]')
            a.wait(lg_all=True)
        if not self.stamps:
            return
        a(f's_memtime s[{sST}:{sST + 1}]')
        a(f'v_writelane_b32 v{vSTAMP}, s{sST}, {idx}')

    def srd(self, d, lo, nbytes):
        a = self.a
        a(f's_mov_b32 s{d}, s{lo}')
        a(f's_mov_b32 s{d + 1}, s{lo + 1}')
        a(f's_mov_b32 s{d + 2}, {nbytes}')
        a(f's_mov_b32 s{d + 3}, 0x20000')

    def poll_issue(self, vdst, n, voff, srd, soff):
        op = {1: 'buffer_load_dword', 4: 'buffer_load_dwordx4'}[n]
        txt = f'{op} {R("v", vdst, n)}, v{voff}, {SRD(srd)}, {soff} offen sc1'
        self.a(txt)
        return (txt, vdst, n)

    def poll_check(self, h):
        a = self.a
        txt, vdst, n = h
        k = self.nspin
        self.nspin += 1
        red = []
        if n == 4:
            red = [f'v_and_b32 v{vdst}, v{vdst}, v{vdst + 1}', f'v_and_b32 v{vdst + 2}, v{vdst + 2}, v{vdst + 3}',
                   f'v_and_b32 v{vdst}, v{vdst}, v{vdst + 2}']
        for t in red:
            a(t)
        a(f'v_cmp_ne_u32 vcc, 1, v{vdst}')
        a(f's_cbranch_vccnz L_spin{k}')
        a.label(f'L_back{k}')
        L = [f'L_spin{k}:', f'    s_mov_b32 s{sSPIN}, 0', f'L_spinl{k}:', '    s_nop 7', '    ' + txt, '    s_waitcnt vmcnt(0)']
        L += ['    ' + t for t in red]
        L += [f'    v_cmp_ne_u32 vcc, 1, v{vdst}', f'    s_cbranch_vccz L_back{k}',
              f'    s_add_u32 s{sSPIN}, s{sSPIN}, 1', f'    s_cmp_lt_u32 s{sSPIN}, 0x8000',
              f'    s_cbranch_scc1 L_spinl{k}', f'    s_branch L_back{k}']
        self.slow += L

    def flag_set(self, soff, vtmp):
        a = self.a
        a(f'v_mov_b32 v{vtmp}, 1')
        a(f'buffer_store_dword v{vtmp}, v{vL0}, {SRD(SWS)}, {soff} offen sc1')

    def prologue(self):
        a = self.a
        a('s_cmp_ge_u32 s2, 256')
        a('s_cbranch_scc1 L_end')
        a('s_load_dwordx16 s[32:47], s[0:1], 0')
        a('s_load_dwordx2 s[48:49], s[0:1], 64')
        if self.stamps:
            a(f'v_mov_b32 v{vSTAMP}, 0')
            a(f's_memrealtime s[{sST - 2}:{sST - 1}]')
            a(f's_memtime s[{sST}:{sST + 1}]')
        if self.opt.get('probe') and self.opt['probe'][0] == 1:
            a(f's_memrealtime s[96:97]')
        a(f's_getpc_b64 s[{SCODE}:{SCODE + 1}]')
        a.label('L_pc')
        a(f's_mov_b32 s{SCODE + 2}, L_codeend-L_pc')
        a(f's_mov_b32 s{SCODE + 3}, 0x20000')
        a(f's_lshr_b32 s{sT}, s2, 3')
        a(f's_lshl_b32 s{sT + 1}, s{sT}, 11')
        a(f'v_lshlrev_b32 v{vT}, 7, v0')
        a(f'v_cmp_gt_u32 vcc, 16, v0')
        a(f'v_mov_b32 v{vT + 1}, {OOB}')
        a(f'v_cndmask_b32 v{vT}, v{vT + 1}, v{vT}, vcc')
        a(f'buffer_load_dword v{vT + 2}, v{vT}, {SRD(SCODE)}, s{sT + 1} offen')
        a(f'v_lshrrev_b32 v{vT + 3}, 6, v0')
        a(f'v_and_b32 v{vLANE}, 63, v0')
        a(f'v_readfirstlane_b32 s{sW}, v{vT + 3}')
        a(f'v_lshlrev_b32 v{vL16}, 4, v{vLANE}')
        a(f'v_cmp_eq_u32 vcc, 0, v{vLANE}')
        a(f's_and_b32 s{sT + 2}, s2, 7')
        a(f'v_cndmask_b32 v{vL0}, v{vT + 1}, v{vLANE}, vcc')
        a(f's_and_b32 s{sT + 3}, s{sT + 2}, 1')
        a(f's_lshl_b32 s{sT + 3}, s{sT + 3}, 3')
        a(f's_and_b32 s{sMT}, s{sT}, 7')
        a(f's_add_u32 s{sMT}, s{sMT}, s{sT + 3}')
        a(f's_lshr_b32 s{sT + 3}, s{sT}, 3')
        a(f's_lshr_b32 s{sROLE}, s{sT + 3}, 1')
        a(f's_and_b32 s{sT + 3}, s{sT + 3}, 1')
        a(f's_and_b32 s{sC}, s{sT + 2}, 6')
        a(f's_add_u32 s{sC}, s{sC}, s{sT + 3}')
        a(f's_lshl_b32 s{sM2}, s{sT + 2}, 2')
        a(f's_and_b32 s{sT + 3}, s{sT}, 3')
        a(f's_add_u32 s{sM2}, s{sM2}, s{sT + 3}')
        a(f's_lshr_b32 s{sN2}, s{sT}, 2')
        a(f's_mov_b32 s{sONES}, 0x3f803f80')
        a(f's_mov_b32 s{sMASK}, 0xffff0000')
        a(f's_mov_b32 s{sL2E}, {fb(LOG2E)}')
        a(f's_mov_b32 s{sLN2}, {fb(LN2)}')
        a(f's_mov_b32 s{sEPSP}, {fb(1e-6 * LOG2E)}')
        J, KS, LC = sT + 4, sT + 5, sT + 6
        a(f's_lshl_b32 s{J}, s{sMT}, 3')
        a(f's_add_u32 s{J}, s{J}, s{sC}')
        a(f's_lshl_b32 s{J}, s{J}, 2')
        a(f's_add_u32 s{J}, s{J}, s{sW}')
        a(f's_xor_b32 s{sT + 3}, s{sROLE}, 1')
        a(f's_lshl_b32 s{sT + 3}, s{sT + 3}, 9')
        a(f's_add_u32 s{J}, s{J}, s{sT + 3}')
        a(f's_mul_i32 s{KS}, s{J}, 6554')
        a(f's_lshr_b32 s{KS}, s{KS}, 16')
        a(f's_mul_i32 s{LC}, s{KS}, 10')
        a(f's_sub_u32 s{LC}, s{J}, s{LC}')
        xo = vACC
        a(f'v_lshrrev_b32 v{vT + 3}, 3, v{vLANE}')
        a(f'v_lshrrev_b32 v{vT + 4}, 4, v{vLANE}')
        a(f'v_and_b32 v{vT + 5}, 7, v{vLANE}')
        a(f'v_xor_b32 v{vT + 6}, v{vT + 5}, v{vT + 4}')
        a(f'v_lshlrev_b32 v{vT + 6}, 4, v{vT + 6}')
        a(f's_movk_i32 s{sT + 3}, 1280')
        a(f'v_mad_u32_u24 v{xo}, v{vT + 3}, s{sT + 3}, v{vT + 6}')
        a(f'v_xor_b32 v{xo + 1}, 64, v{xo}')
        a(f'v_add_u32 v{xo + 2}, {2 * 9216}, v{xo}')
        a(f'v_add_u32 v{xo + 3}, {3 * 9216}, v{xo + 1}')
        a(f'v_add_u32 v{xo + 1}, 9216, v{xo + 1}')
        a(f's_lshl_b32 s{sXO}, s{sMT}, 2')
        a(f's_add_u32 s{sXO}, s{sXO}, s{sW}')
        a(f's_mul_i32 s{sXO}, s{sXO}, {32 * 1280}')
        a(f's_lshl_b32 s{sXM}, s{sW}, 12')
        po = vACC + 4
        i_, p16 = vT + 3, vT + 5
        a(f'v_lshlrev_b32 v{p16}, 4, v{p16}')
        a(f's_cmp_lt_u32 s{KS}, 54')
        a('s_cbranch_scc0 L_pp_wo')
        snap = a.snapshot()
        a(f'v_and_b32 v{vT + 6}, 4, v{i_}')
        a(f'v_add_u32 v{vT + 6}, v{vT + 6}, v{i_}')
        a(f's_lshl_b32 s{sT + 7}, s{KS}, 5')
        for kg in range(4):
            a(f's_add_u32 s{sT + 8}, s{sT + 7}, {16 * (kg >> 1) + 4 * (kg & 1)}')
            a(f'v_add_u32 v{po + kg}, s{sT + 8}, v{vT + 6}')
        a.settle()
        a('s_branch L_pp_join')
        a.label('L_pp_wo')
        a.restore(snap)
        for kg in range(4):
            cid, cc, rem = sT + 7, sT + 8, sT + 9
            a(f's_lshl_b32 s{cid}, s{KS}, 2')
            a(f's_sub_u32 s{cid}, s{cid}, {216 - kg}')
            a(f's_mul_i32 s{cc}, s{cid}, 6554')
            a(f's_lshr_b32 s{cc}, s{cc}, 16')
            a(f's_mul_i32 s{rem}, s{cc}, 10')
            a(f's_sub_u32 s{rem}, s{cid}, s{rem}')
            a(f's_mul_i32 s{cc}, s{cc}, 80')
            a(f's_and_b32 s{cid}, s{rem}, 1')
            a(f's_mul_i32 s{cid}, s{cid}, 10')
            a(f's_add_u32 s{cc}, s{cc}, s{cid}')
            a(f's_lshr_b32 s{rem}, s{rem}, 1')
            a(f's_lshl_b32 s{rem}, s{rem}, 3')
            a(f'v_add_u32 v{vT + 6}, s{rem}, v{i_}')
            a(f'v_mul_u32_u24 v{vT + 7}, 26, v{vT + 6}')
            a(f'v_lshrrev_b32 v{vT + 7}, 8, v{vT + 7}')
            a(f'v_mad_u32_u24 v{vT + 6}, v{vT + 7}, 10, v{vT + 6}')
            a(f'v_add_u32 v{po + kg}, s{cc}, v{vT + 6}')
        a.settle()
        a.label('L_pp_join')
        for kg in range(4):
            a(f'v_mad_u32_u24 v{po + kg}, v{po + kg}, s{sT + 3}, v{p16}')
        a.wait(lg_all=True)
        if self.stamps:
            a(f'v_writelane_b32 v{vSTAMP}, s{sST - 2}, 0')
            a(f'v_writelane_b32 v{vSTAMP}, s{sST}, 1')
        self.srd(SX, 32, 2048 * 1280)
        self.srd(SWS, 48, WS_SIZE)
        self.srd(SINIT, 48, WS_SIZE)
        self.srd(SMARK, 46, 256)
        a('s_cmp_lt_u32 s2, 9')
        a(f's_cselect_b32 s{SINIT + 2}, s{SINIT + 2}, 0')
        a(f's_cselect_b32 s{SMARK + 2}, s{SMARK + 2}, 0')
        z = vT + 8
        for i in range(4):
            a(f'v_mov_b32 v{z + i}, 0')
        a(f's_mul_i32 s{sT + 7}, s2, 12288')
        a(f's_mul_i32 s{sT + 8}, s{sW}, 3072')
        a(f's_add_u32 s{sT + 7}, s{sT + 7}, s{sT + 8}')
        a(f's_add_u32 s{sT + 7}, s{sT + 7}, {WS_KVA}')
        for i in range(3):
            a(f'buffer_store_dwordx4 v[{z}:{z + 3}], v{vL16}, {SRD(SINIT)}, s{sT + 7} offen offset:{i * 1024} sc1')
        a(f's_mov_b32 s{sT + 7}, {640 * 1280}')
        a(f's_cmp_lt_u32 s{KS}, 54')
        a(f's_cselect_b32 s{SPP}, s42, s36')
        a(f's_cselect_b32 s{SPP + 1}, s43, s37')
        a(f's_cselect_b32 s{SPP + 2}, {1728 * 1280}, s{sT + 7}')
        a(f's_mov_b32 s{SPP + 3}, 0x20000')
        self.srd(SPPST, 48, WS_SIZE)
        a(f's_cmp_lt_u32 s{J}, 740')
        a(f's_cselect_b32 s{SPP + 2}, s{SPP + 2}, 0')
        a(f's_cselect_b32 s{SPPST + 2}, s{SPPST + 2}, 0')
        a(f's_lshl_b32 s{sT + 7}, s{LC}, 7')
        for kg in range(4):
            a(f's_add_u32 m0, s{sXM}, {L_PP + kg * 1024}')
            a(f'buffer_load_dwordx4 v{po + kg}, {SRD(SPP)}, s{sT + 7} offen lds', tag='pp')
        a(f's_add_u32 s{sXM}, s{sXM}, {L_XS}')
        for j in range(4):
            self.x_dma(j)
        self.srd(SOUT, 44, 2048 * 1280)
        self.srd(SDBG, 46, 256)
        xr = vACC + 8
        a(f'v_and_b32 v{vT + 3}, 31, v{vLANE}')
        a(f'v_lshrrev_b32 v{vT + 4}, 5, v{vLANE}')
        a(f'v_bfe_u32 v{vT + 5}, v{vLANE}, 1, 3')
        a(f'v_xor_b32 v{vT + 5}, v{vT + 5}, v{vT + 4}')
        a(f'v_lshlrev_b32 v{vT + 5}, 4, v{vT + 5}')
        a(f'v_lshl_add_u32 v{vT + 5}, v{vT + 3}, 7, v{vT + 5}')
        for q in range(4):
            a(f'v_xor_b32 v{xr + q}, {32 * q}, v{vT + 5}')
            a(f'v_add_u32 v{xr + q}, s{sXM}, v{xr + q}')
        a(f'v_bfe_u32 v{vT + 5}, v{vLANE}, 4, 1')
        a(f's_mov_b32 s{sT + 8}, {A2_RB}')
        a(f'v_mul_lo_u32 v{vT + 5}, v{vT + 5}, s{sT + 8}')
        a(f'v_and_b32 v{vT + 6}, 15, v{vLANE}')
        a(f'v_lshl_add_u32 v{vT + 5}, v{vT + 6}, 4, v{vT + 5}')
        a(f'v_lshl_add_u32 v{vST}, v{vT + 4}, 8, v{vT + 5}')
        a(f'v_lshrrev_b32 v{vT + 3}, 4, v{vLANE}')
        a(f'v_bfe_u32 v{vT + 4}, v{vLANE}, 2, 2')
        a(f'v_lshl_add_u32 v{vT + 3}, v{vT + 3}, 3, v{vT + 4}')
        a(f'v_and_b32 v{vT + 4}, 3, v{vLANE}')
        a(f'v_lshlrev_b32 v{vT + 4}, 3, v{vT + 4}')
        a(f'v_lshl_add_u32 v{vT + 3}, v{vT + 3}, 7, v{vT + 4}')
        a(f's_sub_u32 s{sT + 8}, s{sXM}, {L_XS - L_PP}')
        a(f'v_add_u32 v{vT + 3}, s{sT + 8}, v{vT + 3}')
        a(f's_mul_i32 s{sT + 8}, s{KS}, 40960')
        a(f's_lshl_b32 s{sT + 7}, s{LC}, 12')
        a(f's_add_u32 s{sT + 7}, s{sT + 7}, s{sT + 8}')
        a(f's_add_u32 s{sT + 7}, s{sT + 7}, {WS_B2}')
        a(f's_lshl_b32 s{sT + 8}, s2, 2')
        a(f's_add_u32 s{sT + 8}, s{sT + 8}, s{sW}')
        a(f's_lshl_b32 s{sT + 8}, s{sT + 8}, 2')
        a(f'v_mov_b32 v{vT + 4}, 1')
        a.wait(vm_tag='pp')
        a(f'buffer_store_dword v{vT + 4}, v{vL0}, {SRD(SMARK)}, s{sT + 8} offen sc1')
        pf = vACC + 16
        for cb in range(4):
            for ii in range(2):
                a(f'ds_read_b64_tr_b16 v[{pf + 4 * cb + 2 * ii}:{pf + 4 * cb + 2 * ii + 1}], v{vT + 3} offset:{ii * 512 + cb * 32}')
        for cb in range(4):
            a(f'buffer_store_dwordx4 v[{pf + 4 * cb}:{pf + 4 * cb + 3}], v{vL16}, {SRD(SPPST)}, s{sT + 7} offen offset:{cb * 1024} sc1')
        self.stamp(2)
        a(f's_cmp_eq_u32 s{sROLE}, 0')
        a('s_cbranch_scc1 L_attn')

    def x_dma(self, j):
        a = self.a
        a(f's_add_u32 m0, s{sXM}, {(j % 4) * 16384}')
        if j:
            a(f's_add_u32 s{sXO}, s{sXO}, 128')
        for i in range(4):
            a(f'buffer_load_dwordx4 v{vACC + i}, {SRD(SX)}, s{sXO} offen offset:{i * 1024} lds', tag=f'x{j}')

    def x_phase(self, bdma):
        a = self.a
        xr = vACC + 8
        s1a, s1b, s2a, s2b = vACC + 12, vACC + 13, vACC + 14, vACC + 15
        for r in (s1a, s1b, s2a, s2b):
            a(f'v_mov_b32 v{r}, 0')
        a(f'v_min_u32 v{vT + 12}, 35, v{vLANE}')
        a(f'v_lshlrev_b32 v{vT + 12}, 2, v{vT + 12}')
        h0 = None
        for j in range(10):
            a.wait(vm_tag=f'x{j}')
            for q in range(4):
                d = vA + 16 * j + 4 * q
                a(f'ds_read_b128 v[{d}:{d + 3}], v{xr + q} offset:{(j % 4) * 16384}')
            a.wait(lg_all=True)
            if j + 4 < 10:
                self.x_dma(j + 4)
            elif j == 6:
                h0 = self.poll_issue(vT + 13, 1, vT + 12, SDBG, '0')
                for t in bdma(0):
                    t()
            elif j == 7:
                for t in bdma(1):
                    t()
            for t in range(16):
                d = vA + 16 * j + t
                a(f'v_dot2c_f32_bf16 v{(s1a, s1b)[t & 1]}, s{sONES}, v{d}')
                a(f'v_dot2c_f32_bf16 v{(s2a, s2b)[t & 1]}, v{d}, v{d}')
        a(f'v_add_f32 v{s1a}, v{s1a}, v{s1b}')
        a(f'v_add_f32 v{s2a}, v{s2a}, v{s2b}')
        a(f'v_mov_b32 v{s1b}, v{s1a}')
        a(f'v_mov_b32 v{s2b}, v{s2a}')
        a(f'v_permlane32_swap_b32 v{s1a}, v{s1b}')
        a(f'v_permlane32_swap_b32 v{s2a}, v{s2b}')
        a(f'v_add_f32 v{s1a}, v{s1a}, v{s1b}')
        a(f'v_add_f32 v{s2a}, v{s2a}, v{s2b}')
        a(f'v_mul_f32 v{s1a}, {fb(1.0 / 640)}, v{s1a}')
        a(f'v_mul_f32 v{s2a}, {fb(1.0 / 640)}, v{s2a}')
        a(f'v_fma_f32 v{s2a}, -v{s1a}, v{s1a}, v{s2a}')
        a(f'v_max_f32 v{s2a}, 0, v{s2a}')
        a(f'v_add_f32 v{s2a}, {fb(1e-5)}, v{s2a}')
        a(f'v_rsq_f32 v{vR}, v{s2a}')
        a(f'v_mul_f32 v{vR}, s{sL2E}, v{vR}')
        a(f'v_mul_f32_e64 v{vC}, -v{s1a}, v{vR}')
        self.poll_check(h0)
        for t in self.ln_ops(0):
            a(t)
        self.stamp(3)

    def ln_ops(self, ks):
        ops = []
        for i in range(4):
            d = vA + 4 * ks + i
            ta, tb = vT + 2 * (i & 1), vT + 2 * (i & 1) + 1
            ops += [f'v_lshlrev_b32 v{ta}, 16, v{d}', f'v_and_b32 v{tb}, s{sMASK}, v{d}',
                    f'v_fma_f32 v{ta}, v{ta}, v{vR}, v{vC}', f'v_fma_f32 v{tb}, v{tb}, v{vR}, v{vC}',
                    f'v_cvt_pk_bf16_f32 v{d}, v{ta}, v{tb}']
        return ops

    def gemm_stream(self, passes, LA, bdma, nchunks, after_first_barrier, between):
        a = self.a
        M = []
        for pi, p in enumerate(passes):
            for ks in range(40):
                for b in range(p['nb']):
                    M.append((pi, ks, b))
        frag = lambda m: aRING + 4 * (m % 8)
        pend = []

        def boundary(m):
            pi, ks, b = M[m]
            p = passes[pi]
            return b == 0 and ks % p['spc'] == 0

        def reads(m):
            pi, ks, b = M[m]
            p = passes[pi]
            g = p['g0'] + ks // p['spc']
            if boundary(m):
                while pend:
                    pend.pop(0)()
                a.wait(vm_tag=f'b{g}')
                a('s_barrier')
                if g == 0:
                    after_first_barrier()
                if g + 2 < nchunks:
                    pend.extend(bdma(g + 2))
            for ii in range(2):
                reg, imm = p['addr'](ks % p['spc'], b, ii, g % 4)
                a(f'ds_read_b64_tr_b16 a[{frag(m) + 2 * ii}:{frag(m) + 2 * ii + 1}], v{reg} offset:{imm}')

        for m in range(LA):
            reads(m)
        m = 0
        for pi, p in enumerate(passes):
            nb = p['nb']
            for ks in range(40):
                fill = list(p['fill'](ks))
                need = set()
                for b in range(nb):
                    need |= rs('a', frag(m + b), 4)
                a.wait(regs=need)
                ndma = min(len(pend), p.get('dps', 1))
                cost = [16 + (16 if b < ndma else 0) + (8 if m + b + LA < len(M) and boundary(m + b + LA) else 0) for b in range(nb)]
                cost[nb - 1] += 4
                cnt = [0] * nb
                for _ in fill:
                    g = min(range(nb), key=lambda i: cost[i])
                    cost[g] += 4
                    cnt[g] += 1
                for b in range(nb):
                    acc = p['acc'](b)
                    xa, wa = R('v', vA + 4 * ks, 4), R('a', frag(m), 4)
                    o1, o2 = (xa, wa) if p['xfirst'] else (wa, xa)
                    a(f'v_mfma_f32_32x32x16_bf16 {acc}, {o1}, {o2}, {acc if ks else 0}')
                    if b < ndma and pend:
                        pend.pop(0)()
                    for _ in range(cnt[b]):
                        t = fill.pop(0)
                        t() if callable(t) else a(t)
                    if m + LA < len(M):
                        reads(m + LA)
                    m += 1
            between(pi, pend)

    def s1_flag(self):
        a = self.a
        a(f's_lshl_b32 s{sT}, s2, 2')
        a(f's_add_u32 s{sT}, s{sT}, {FL_S1}')
        a(f's_cmp_eq_u32 s{sW}, 0')
        a(f's_cselect_b32 s{sT}, s{sT}, {OOB}')
        self.flag_set(f's{sT}', vT + 4)

    def s3_flag(self, stage):
        a = self.a
        a(f's_mul_i32 s{sT}, s{sMT}, 384')
        a(f's_lshr_b32 s{sT + 1}, s{sW}, 1')
        a(f's_lshl_b32 s{sT + 1}, s{sT + 1}, 6')
        a(f's_add_u32 s{sT}, s{sT}, s{sT + 1}')
        a(f's_lshl_b32 s{sT + 1}, s{sC}, 3')
        a(f's_add_u32 s{sT}, s{sT}, s{sT + 1}')
        a(f's_and_b32 s{sT + 1}, s{sW}, 1')
        a(f's_lshl_b32 s{sT + 1}, s{sT + 1}, 2')
        a(f's_add_u32 s{sT}, s{sT}, s{sT + 1}')
        a(f's_add_u32 s{sT}, s{sT}, {FL_S3 + stage * 128}')
        a.wait(vm_tag='a2st')
        self.flag_set(f's{sT}', vT + 4)

    def a2_base(self, sd, chunk_mul, chunk_add):
        a = self.a
        a(f's_lshl_b32 s{sd}, s{sMT}, 2')
        a(f's_add_u32 s{sd}, s{sd}, s{sW}')
        a(f's_mul_i32 s{sd}, s{sd}, {2 * A2_RB}')
        a(f's_mul_i32 s{sT + 15}, s{sC}, {chunk_mul * 256}')
        a(f's_add_u32 s{sd}, s{sd}, s{sT + 15}')
        if chunk_add:
            a(f's_add_u32 s{sd}, s{sd}, {WS_A2 + chunk_add * 256}')

    def frag_lane(self, pitch, dst):
        a = self.a
        a(f'v_lshrrev_b32 v{vT}, 5, v{vLANE}')
        a(f'v_bfe_u32 v{vT + 1}, v{vLANE}, 2, 2')
        a(f'v_lshl_add_u32 v{vT}, v{vT}, 3, v{vT + 1}')
        a(f'v_mul_u32_u24 v{vT}, {pitch}, v{vT}')
        a(f'v_bfe_u32 v{vT + 2}, v{vLANE}, 4, 1')
        a(f'v_lshl_add_u32 v{vT}, v{vT + 2}, 5, v{vT}')
        a(f'v_and_b32 v{vT + 2}, 3, v{vLANE}')
        a(f'v_lshl_add_u32 v{dst}, v{vT + 2}, 3, v{vT}')

    def silu_block(self, kind, base, soff, imm0):
        a = self.a
        for j in range(2):
            t, e, pk = vT, vT + 8, vT + 8
            src = []
            for i in range(8):
                if kind == 'a':
                    a(f'v_accvgpr_read_b32 v{t + i}, a{base + 8 * j + i}')
                    src.append(t + i)
                else:
                    src.append(base + 8 * j + i)
            for i in range(8):
                a(f'v_exp_f32_e64 v{e + i}, -v{src[i]}')
            for i in range(8):
                a(f'v_fma_f32 v{e + i}, v{e + i}, s{sL2E}, s{sL2E}')
            for i in range(8):
                a(f'v_rcp_f32 v{e + i}, v{e + i}')
            for i in range(8):
                a(f'v_mul_f32 v{src[i]}, v{src[i]}, v{e + i}')
            for i in range(4):
                a(f'v_cvt_pk_bf16_f32 v{pk + i}, v{src[2 * i]}, v{src[2 * i + 1]}')
            a(f'buffer_store_dwordx4 v[{pk}:{pk + 3}], v{vST}, {SRD(SWS)}, {soff} offen offset:{imm0 + j * 512} sc1', tag='a2st')

    def role_h(self):
        a = self.a
        self.srd(SW, 40, 640 * 3456)
        a(f'v_lshrrev_b32 v{vT}, 4, v{vLANE}')
        a(f'v_lshlrev_b32 v{vT + 1}, 2, v{vT}')
        a(f'v_and_b32 v{vT + 2}, 15, v{vLANE}')
        a(f'v_xor_b32 v{vT + 1}, v{vT + 1}, v{vT + 2}')
        a(f'v_lshlrev_b32 v{vT + 1}, 4, v{vT + 1}')
        a(f's_lshl_b32 s{sT}, s{sW}, 4')
        a(f'v_add_u32 v{vT}, s{sT}, v{vT}')
        a(f's_movk_i32 s{sT + 1}, 3456')
        a(f'v_mad_u32_u24 v{vDO}, v{vT}, s{sT + 1}, v{vT + 1}')
        for i in range(1, 4):
            a(f'v_add_u32 v{vDO + i}, {i * (4 * 3456 - 1024)}, v{vDO}')
        for i in range(3):
            a(f'v_add_u32 v{vT}, {64 * i}, v{vLANE}')
            a(f'v_mul_u32_u24 v{vT + 1}, 171, v{vT}')
            a(f'v_lshrrev_b32 v{vT + 1}, 11, v{vT + 1}')
            a(f'v_mul_u32_u24 v{vT + 2}, 12, v{vT + 1}')
            a(f'v_sub_u32 v{vT}, v{vT}, v{vT + 2}')
            a(f'v_lshlrev_b32 v{vT}, 4, v{vT}')
            a(f'v_add_u32 v{vT + 1}, s{sT}, v{vT + 1}')
            a(f'v_mad_u32_u24 v{vT}, v{vT + 1}, s{sT + 1}, v{vT}')
            if i:
                a(f'v_subrev_u32 v{vT}, {1024 * i}, v{vT}')
            a(f'v_accvgpr_write_b32 a{aPARK + i}, v{vT}')
        self.frag_lane(192, vDO + 4)
        self.frag_lane(256, vT + 3)
        for q in range(4):
            a(f'v_xor_b32 v{vT + 2}, {q}, v{vT + 1}')
            a(f'v_lshl_add_u32 v{vRD + q}, v{vT + 2}, 6, v{vT + 3}')
        a(f's_lshl_b32 s{sBO}, s{sC}, 8')
        a(f's_lshl_b32 s{sBM}, s{sW}, 12')

        def bdma(g):
            n = 4 if g < 10 else 3
            out = []
            for i in range(n):
                def f(i=i):
                    if i == 0:
                        if g == 10:
                            for k in range(3):
                                a(f'v_accvgpr_read_b32 v{vDO + k}, a{aPARK + k}')
                            a(f's_mul_i32 s{sBO}, s{sC}, 192')
                            a(f's_add_u32 s{sBO}, s{sBO}, 2048')
                            a(f's_mul_i32 s{sBM}, s{sW}, 3072')
                        a(f's_add_u32 m0, s{sBM}, {(g % 4) * 16384}')
                        if g not in (0, 10):
                            a(f's_add_u32 s{sBO}, s{sBO}, {64 * 3456}')
                    a(f'buffer_load_dwordx4 v{vDO + i}, {SRD(SW)}, s{sBO} offen offset:{i * 1024} lds', tag=f'b{g}')
                out.append(f)
            return out

        self.x_phase(bdma)
        p1 = dict(nb=4, spc=4, g0=0, xfirst=False, acc=lambda b: R('v', vACC + 16 * b, 16),
                  addr=lambda s, b, ii, slot: (vRD + b, slot * 16384 + s * 4096 + ii * 1024),
                  fill=lambda ks: self.ln_ops(ks + 1) if ks < 39 else [])
        p2 = dict(nb=3, spc=4, g0=10, xfirst=False, acc=lambda b: R('a', aACC + 16 * b, 16),
                  addr=lambda s, b, ii, slot: (vDO + 4, slot * 16384 + s * 3072 + ii * 768 + b * 64),
                  fill=lambda ks: [])

        def between(pi, pend):
            while pend:
                pend.pop(0)()
            self.stamp(4 + 2 * pi)
            if pi == 0:
                self.a2_base(sT + 2, 16, 0)
                for b in range(4):
                    self.silu_block('v', vACC + 16 * b, f's{sT + 2}', b * 1024)
                self.s3_flag(0)
            else:
                self.a2_base(sT + 2, 12, 128)
                a(f's_cmp_eq_u32 s{sC}, 7')
                a(f's_cselect_b32 s{sT + 3}, {OOB}, s{sT + 2}')
                for b in range(3):
                    self.silu_block('a', aACC + 16 * b, f's{sT + 2 + (1 if b else 0)}', b * 1024)
                self.s3_flag(1)
            self.stamp(5 + 2 * pi)

        self.gemm_stream([p1, p2], 6, bdma, 20, self.s1_flag, between)

    def phi8(self, src, sel=None):
        a = self.a
        e = vT + 8
        for i in range(8):
            a(f'v_exp_f32_e64 v{e + i}, v{src[i]} clamp')
        if sel is None:
            for i in range(8):
                a(f'v_max_f32 v{src[i]}, s{sEPSP}, v{src[i]}')
            for i in range(8):
                a(f'v_fma_f32 v{src[i]}, v{src[i]}, s{sLN2}, v{e + i}')
        else:
            for i in range(8):
                a(f'v_max_f32 v{vT + i}, s{sEPSP}, v{src[i]}')
            for i in range(8):
                a(f'v_fma_f32 v{vT + i}, v{vT + i}, s{sLN2}, v{e + i}')
            for i in range(8):
                a(f'v_cndmask_b32 v{src[i]}, v{src[i]}, v{vT + i}, {sel}')

    def role_attn(self):
        a = self.a
        self.srd(SW, 34, 640 * 3840)
        a(f's_lshl_b32 s{sT}, s{sW}, 4')
        a(f's_movk_i32 s{sT + 1}, 3840')
        for i in range(5):
            imm = 1024 * i if i < 4 else 0
            a(f'v_add_u32 v{vT}, {64 * i}, v{vLANE}')
            a(f'v_mul_u32_u24 v{vT + 1}, 205, v{vT}')
            a(f'v_lshrrev_b32 v{vT + 1}, 12, v{vT + 1}')
            a(f'v_mul_u32_u24 v{vT + 2}, 20, v{vT + 1}')
            a(f'v_sub_u32 v{vT}, v{vT}, v{vT + 2}')
            a(f'v_cmp_le_u32 vcc, 10, v{vT}')
            a(f'v_lshlrev_b32 v{vT}, 4, v{vT}')
            a(f'v_add_u32 v{vT + 1}, s{sT}, v{vT + 1}')
            a(f'v_mad_u32_u24 v{vT}, v{vT + 1}, s{sT + 1}, v{vT}')
            if imm:
                a(f'v_subrev_u32 v{vT}, {imm}, v{vT}')
            a(f'v_add_u32 v{vT + 1}, 1120, v{vT}')
            a(f'v_add_u32 v{vT + 2}, {64 * 3840 - 160}, v{vT}')
            a(f'v_cndmask_b32 v{vDO + i}, v{vT}, v{vT + 1}, vcc')
            a(f'v_cndmask_b32 v{vT + 2}, v{vT}, v{vT + 2}, vcc')
            a(f'v_accvgpr_write_b32 a{aPARK + i}, v{vT + 2}')
        self.frag_lane(320, vRD)
        a(f'v_add_u32 v{vRD + 1}, 40960, v{vRD}')
        a(f's_mul_i32 s{sBO}, s{sC}, 160')
        a(f's_add_u32 s{sBO}, s{sBO}, 1280')
        a(f's_mul_i32 s{sBM}, s{sW}, 5120')

        def bdma(g):
            out = []
            for i in range(5):
                def f(i=i):
                    if i == 0:
                        if g == 10:
                            for k in range(5):
                                a(f'v_accvgpr_read_b32 v{vDO + k}, a{aPARK + k}')
                            a(f's_mul_i32 s{sBO}, s{sC}, 160')
                        a(f's_add_u32 m0, s{sBM}, {(g % 4) * 20480}')
                        if g not in (0, 10):
                            a(f's_add_u32 s{sBO}, s{sBO}, {(64 if g < 10 else 128) * 3840}')
                    if i == 4:
                        a(f's_add_u32 m0, s{sBM}, {(g % 4) * 20480 + 4096}')
                    a(f'buffer_load_dwordx4 v{vDO + i}, {SRD(SW)}, s{sBO} offen offset:{(i % 4) * 1024} lds', tag=f'b{g}')
                out.append(f)
            return out

        self.x_phase(bdma)
        kvacc = lambda b: R('v', vACC + 16 * b, 16) if b < 4 else R('a', aACC + 48, 16)
        p1 = dict(nb=5, spc=4, g0=0, xfirst=True, acc=kvacc, dps=2,
                  addr=lambda s, b, ii, slot: (vRD + (slot >> 1), (slot & 1) * 20480 + s * 5120 + ii * 1280 + b * 64),
                  fill=lambda ks: self.ln_ops(ks + 1) if ks < 39 else [])
        p2 = dict(nb=3, spc=8, g0=10, xfirst=False, acc=lambda b: R('a', aACC + 16 * b, 16),
                  addr=lambda s, b, ii, slot: (vRD + (slot >> 1), (slot & 1) * 20480 + (s & 3) * 5120 + (s >> 2) * 160 + ii * 1280 + b * 64),
                  fill=lambda ks: [])

        def kv_epilogue():
            wa, ka, va = vRD + 2, vRD + 3, vR
            a(f'v_lshrrev_b32 v{vT}, 5, v{vLANE}')
            a(f'v_and_b32 v{vT + 1}, 31, v{vLANE}')
            a(f'v_mul_u32_u24 v{vT}, {XP}, v{vT}')
            a(f'v_lshl_add_u32 v{vT + 2}, v{vT + 1}, 4, v{vT}')
            a(f's_mul_i32 s{sT}, s{sW}, {4 * XP}')
            a(f's_add_u32 s{sT}, s{sT}, {L_X}')
            a(f'v_add_u32 v{wa}, s{sT}, v{vT + 2}')
            a(f's_mul_i32 s{sT + 1}, s{sW}, 320')
            a(f's_add_u32 s{sT + 1}, s{sT + 1}, {L_X}')
            a(f'v_add_u32 v{ka}, s{sT + 1}, v{vT + 2}')
            a(f'v_add_u32 v{va}, 1280, v{ka}')
            a(f'v_add_u32 v{vT + 3}, {L_X + 2560}, v{vT}')
            a(f'v_cmp_gt_u32 vcc, 20, v{vT + 1}')
            a(f'v_cndmask_b32 v{va}, v{vT + 3}, v{va}, vcc')
            a(f'v_and_b32 v{vT + 3}, 3, v{vLANE}')
            a(f'v_mul_u32_u24 v{vT + 3}, {XP}, v{vT + 3}')
            a(f'v_add_u32 v{vT + 3}, s{sT}, v{vT + 3}')
            for i in range(4):
                a(f'v_mov_b32 v{vT + 4 + i}, s{sONES}')
            a(f'ds_write_b128 v{vT + 3}, v[{vT + 4}:{vT + 7}] offset:2560')
            a(f'v_cmp_gt_u32 s[{sT + 2}:{sT + 3}], 16, v{vT + 1}')
            for b in range(5):
                for j in range(2):
                    if b < 4:
                        src = [vACC + 16 * b + 8 * j + i for i in range(8)]
                    else:
                        src = [vT + i for i in range(8)]
                        for i in range(8):
                            a(f'v_accvgpr_read_b32 v{src[i]}, a{aACC + 48 + 8 * j + i}')
                    if b < 2:
                        self.phi8(src)
                    elif b == 2:
                        self.phi8(src, f's[{sT + 2}:{sT + 3}]')
                    pk = vT + 8 + 4 * j
                    for i in range(4):
                        a(f'v_cvt_pk_bf16_f32 v{pk + i}, v{src[2 * i]}, v{src[2 * i + 1]}')
                    a(f'ds_write_b128 v{wa}, v[{pk}:{pk + 3}] offset:{j * 2 * XP + b * 512}')
            a.wait(lg_all=True)
            a('s_barrier')
            fr = vACC + 16
            D = R('v', vACC, 16)
            for t in range(8):
                f = fr + 8 * (t % 6)
                a(f'ds_read_b128 v[{f}:{f + 3}], v{va} offset:{t * 2 * XP}')
                a(f'ds_read_b128 v[{f + 4}:{f + 7}], v{ka} offset:{t * 2 * XP}')
                if t >= 5:
                    u = t - 5
                    g = fr + 8 * (u % 6)
                    a(f'v_mfma_f32_32x32x16_bf16 {D}, v[{g}:{g + 3}], v[{g + 4}:{g + 7}], {D if u else 0}')
            for u in range(3, 8):
                g = fr + 8 * (u % 6)
                a(f'v_mfma_f32_32x32x16_bf16 {D}, v[{g}:{g + 3}], v[{g + 4}:{g + 7}], {D}')
            a(f'v_lshrrev_b32 v{vT}, 5, v{vLANE}')
            a(f'v_and_b32 v{vT + 1}, 31, v{vLANE}')
            a(f'v_lshlrev_b32 v{vT + 2}, 2, v{vT + 1}')
            a(f'v_lshl_add_u32 v{vT + 2}, v{vT}, 9, v{vT + 2}')
            a(f'v_mov_b32 v{vT + 3}, {OOB}')
            a(f'v_cmp_gt_u32 vcc, 20, v{vT + 1}')
            a(f'v_cndmask_b32 v{vT + 2}, v{vT + 3}, v{vT + 2}, vcc')
            a(f'v_cmp_gt_u32 vcc, 20, v{vLANE}')
            a(f'v_cndmask_b32 v{vT + 3}, v{vT + 3}, v{vT + 2}, vcc')
            a(f's_lshl_b32 s{sT}, s{sC}, 2')
            a(f's_add_u32 s{sT}, s{sT}, s{sW}')
            a(f's_mul_i32 s{sT}, s{sT}, 3072')
            a(f's_add_u32 s{sT}, s{sT}, {WS_KVA}')
            for r in range(12):
                a(f'buffer_atomic_add_f32 v{vACC + r}, v{vT + (2 if r < 9 else 3)}, {SRD(SWS)}, s{sT} offen offset:{(8 * (r >> 2) + (r & 3)) * 128}', tag='kva')
            a(f's_lshl_b32 s{sT}, s{sC}, 4')
            a(f's_add_u32 s{sT}, s{sT}, s{sMT}')
            a(f's_lshl_b32 s{sT}, s{sT}, 2')
            a(f's_add_u32 s{sT}, s{sT}, s{sW}')
            a(f's_lshl_b32 s{sT}, s{sT}, 2')
            a(f's_add_u32 s{sT}, s{sT}, {FL_S2}')
            a.wait(vm_tag='kva')
            self.flag_set(f's{sT}', vT + 4)

        def q_epilogue():
            pq = vA
            a(f'v_lshlrev_b32 v{vR}, 2, v{vLANE}')
            a(f's_lshl_b32 s{sT + 4}, s{sC}, 8')
            a(f's_add_u32 s{sT + 4}, s{sT + 4}, {FL_S2}')
            h = self.poll_issue(vC, 1, vR, SWS, f's{sT + 4}')
            for g in range(5):
                src = [vT + i for i in range(8)]
                for i in range(8):
                    a(f'v_accvgpr_read_b32 v{src[i]}, a{aACC + 8 * g + i}')
                self.phi8(src)
                for i in range(4):
                    a(f'v_cvt_pk_bf16_f32 v{pq + 4 * g + i}, v{src[2 * i]}, v{src[2 * i + 1]}')
            self.poll_check(h)
            self.stamp(8)
            kf = vA + 32
            a(f's_mul_i32 s{sT}, s{sC}, 12288')
            a(f's_lshl_b32 s{sT + 1}, s{sW}, 10')
            a(f's_add_u32 s{sT}, s{sT}, s{sT + 1}')
            a(f's_add_u32 s{sT}, s{sT}, {WS_KVA}')
            for i in range(3):
                a(f'buffer_load_dwordx4 v[{kf + 4 * i}:{kf + 4 * i + 3}], v{vL16}, {SRD(SWS)}, s{sT} offen sc1')
                if i < 2:
                    a(f's_add_u32 s{sT}, s{sT}, 4096')
            a(f's_lshl_b32 s{sT + 1}, s{sW}, 9')
            a(f's_add_u32 s{sT + 1}, s{sT + 1}, {L_KVL}')
            a(f'v_lshl_add_u32 v{vT}, v{vLANE}, 3, s{sT + 1}')
            a(f'v_bfe_u32 v{vT + 1}, v{vLANE}, 3, 2')
            a(f'v_and_b32 v{vT + 2}, 3, v{vLANE}')
            a(f'v_lshl_add_u32 v{vT + 1}, v{vT + 1}, 2, v{vT + 2}')
            a(f'v_bfe_u32 v{vT + 2}, v{vLANE}, 2, 1')
            a(f'v_mad_u32_u24 v{vT + 2}, v{vT + 2}, 10, v{vT + 1}')
            a(f'v_cmp_gt_u32 vcc, 10, v{vT + 1}')
            a(f'v_cndmask_b32 v{vT + 2}, 20, v{vT + 2}, vcc')
            a(f'v_lshlrev_b32 v{vT + 2}, 6, v{vT + 2}')
            a(f'v_lshrrev_b32 v{vT + 1}, 5, v{vLANE}')
            a(f'v_lshl_add_u32 v{vT + 2}, v{vT + 1}, 3, v{vT + 2}')
            a(f'v_add_u32 v{vT + 2}, {L_KVL}, v{vT + 2}')
            for i in range(3):
                f = kf + 4 * i
                a(f'v_cvt_pk_bf16_f32 v{f}, v{f}, v{f + 1}')
                a(f'v_cvt_pk_bf16_f32 v{f + 1}, v{f + 2}, v{f + 3}')
                a(f'ds_write_b64 v{vT}, v[{f}:{f + 1}] offset:{i * 2048}')
            a.wait(lg_all=True)
            a('s_barrier')
            ko = vA + 48
            for hd in range(4):
                for u in range(3):
                    f = ko + 6 * hd + 2 * u
                    a(f'ds_read_b64 v[{f}:{f + 1}], v{vT + 2} offset:{hd * 1536 + u * 16 - (8 if hd & 1 else 0)}')
            win = [0, 4, 10, 14]
            for hd in range(4):
                D = R('v', vACC + 16 * hd, 16)
                a(f'v_mfma_f32_32x32x16_bf16 {D}, v[{ko + 6 * hd}:{ko + 6 * hd + 3}], v[{pq + win[hd]}:{pq + win[hd] + 3}], 0')
            for hd in range(4):
                D = R('v', vACC + 16 * hd, 16)
                a(f'v_mfma_f32_32x32x8_bf16 {D}, v[{ko + 6 * hd + 4}:{ko + 6 * hd + 5}], v[{pq + win[hd] + 4}:{pq + win[hd] + 5}], {D}')
            self.a2_base(sT + 2, 10, 216)
            a(f'v_mov_b32 v{vT + 4}, s{sEPSP}')
            ob = vA + 80
            for hd in range(4):
                d = vACC + 16 * hd
                a(f'v_fma_f32 v{d + 10}, v{d + 10}, s{sL2E}, v{vT + 4}')
                a(f'v_rcp_f32 v{d + 10}, v{d + 10}')
                for i in range(10):
                    a(f'v_mul_f32 v{d + i}, v{d + i}, v{d + 10}')
                for i in range(5):
                    a(f'v_cvt_pk_bf16_f32 v{ob + 5 * hd + i}, v{d + 2 * i}, v{d + 2 * i + 1}')
            for t in range(5):
                a(f'buffer_store_dwordx4 v[{ob + 4 * t}:{ob + 4 * t + 3}], v{vST}, {SRD(SWS)}, s{sT + 2} offen offset:{t * 512} sc1', tag='a2st')
            self.s3_flag(2)

        def between(pi, pend):
            while pend:
                pend.pop(0)()
            self.stamp(4 + 2 * pi)
            if pi == 0:
                kv_epilogue()
            else:
                q_epilogue()
            self.stamp(5 + 2 * pi)

        self.gemm_stream([p1, p2], 7, bdma, 15, self.s1_flag, between)

    def phase2(self):
        a = self.a
        vAO, vFL, vFT, vX = 2, 6, 8, 12
        acc0, ab0, bv0 = 32, 112, 176
        acc = lambda rho, cb: R('v', acc0 + 20 * rho + 4 * cb, 4)
        abuf = lambda i, rho: ab0 + 16 * (i % 4) + 4 * rho

        def breg(i, cb):
            if i < 12:
                return ('a', 20 * i + 4 * cb)
            if i < 16:
                return ('v', bv0 + 20 * (i - 12) + 4 * cb)
            return ('a', 20 * (i - 16) + 4 * cb)
        sKE, sKM, sKL, sBB, sAB, sB, sFL = sT, sT + 1, sT + 2, sT + 3, sT + 4, sT + 9, sT + 11
        a(f's_mov_b32 s{sT + 12}, {FL_S1}')
        h1 = self.poll_issue(vFT, 4, vL16, SWS, f's{sT + 12}')
        a(f's_lshl_b32 s{sKE}, s{sW}, 3')
        a(f's_mul_i32 s{sKM}, s{sW}, 6')
        a(f's_add_u32 s{sKM}, s{sKM}, 32')
        a(f's_mul_i32 s{sKL}, s{sW}, 5')
        a(f's_add_u32 s{sKL}, s{sKL}, 54')
        a(f's_mul_i32 s{sBB}, s{sN2}, 5120')
        a(f's_add_u32 s{sBB}, s{sBB}, {WS_B2}')
        kreg = lambda i: (sKE, i) if i < 8 else ((sKM, i - 8) if i < 14 else (sKL, i - 14))
        grp = {0: 0, 4: 1, 8: 2, 12: 3, 14: 4}
        for st, g in grp.items():
            kr, o = kreg(st)
            a(f's_add_u32 s{sAB + g}, s{kr}, {o}')
            a(f's_lshl_b32 s{sAB + g}, s{sAB + g}, 10')
        a(f's_cmp_eq_u32 s{sW}, 3')
        a(f's_cselect_b32 s{sAB + 3}, {OOB}, s{sAB + 3}')
        for rho in range(4):
            a(f's_add_u32 s{sT + 13}, s{sW}, {rho + 1}')
            a(f's_and_b32 s{sT + 13}, s{sT + 13}, 3')
            a(f's_lshl_b32 s{sT + 14}, s{sM2}, 2')
            a(f's_add_u32 s{sT + 13}, s{sT + 13}, s{sT + 14}')
            a(f's_mul_i32 s{sT + 13}, s{sT + 13}, {A2_RB}')
            a(f'v_add_u32 v{vAO + rho}, s{sT + 13}, v{vL16}')
        a(f'v_and_b32 v{vFL}, 15, v{vLANE}')
        a(f'v_lshlrev_b32 v{vFL}, 2, v{vFL}')
        a(f's_lshr_b32 s{sFL}, s{sM2}, 1')
        a(f's_mul_i32 s{sFL}, s{sFL}, 384')
        a(f's_and_b32 s{sT + 13}, s{sM2}, 1')
        a(f's_lshl_b32 s{sT + 13}, s{sT + 13}, 6')
        a(f's_add_u32 s{sFL}, s{sFL}, s{sT + 13}')
        a(f's_add_u32 s{sFL}, s{sFL}, {FL_S3}')
        self.poll_check(h1)
        self.stamp(9)

        def bload(i):
            out = []
            for cb in range(5):
                def f(cb=cb):
                    if cb == 0:
                        kr, o = kreg(i)
                        a(f's_add_u32 s{sB}, s{kr}, {o}')
                        a(f's_mul_i32 s{sB}, s{sB}, 40960')
                        a(f's_add_u32 s{sB}, s{sB}, s{sBB}')
                        if i in (12, 13):
                            a(f's_cmp_eq_u32 s{sW}, 3')
                            a(f's_cselect_b32 s{sB}, {OOB}, s{sB}')
                        a(f's_add_u32 s{sB + 1}, s{sB}, 4096')
                    k, r = breg(i, cb)
                    a(f'buffer_load_dwordx4 {R(k, r, 4)}, v{vL16}, {SRD(SWS)}, s{sB + (cb >> 2)} offen offset:{(cb & 3) * 1024} sc1')
                out.append(f)
            return out

        def aload(i, rho):
            if i == 18 and rho == 0:
                a(f's_add_u32 s{sAB + 4}, s{sAB + 4}, 4096')
            st = max(s for s in grp if s <= i)
            a(f'buffer_load_dwordx4 {R("v", abuf(i, rho), 4)}, v{vAO + rho}, {SRD(SWS)}, s{sAB + grp[st]} offen offset:{((i - st) & 3) * 1024} sc1')

        for i in range(12):
            for t in bload(i):
                t()
        h = self.poll_issue(vFT, 1, vFL, SWS, f's{sFL}')
        self.poll_check(h)
        self.stamp(10)
        for i in range(4):
            for rho in range(4):
                aload(i, rho)
        a(f'v_and_b32 v{vFT + 1}, 15, v{vLANE}')
        a(f'v_lshrrev_b32 v{vFT + 2}, 4, v{vLANE}')
        a(f'v_mul_u32_u24 v{vFT + 1}, 1280, v{vFT + 1}')
        a(f'v_lshl_add_u32 v7, v{vFT + 2}, 3, v{vFT + 1}')
        a(f's_lshl_b32 s{sT + 13}, s{sM2}, 2')
        a(f's_add_u32 s{sT + 13}, s{sT + 13}, s{sW}')
        a(f's_mul_i32 s{sT + 13}, s{sT + 13}, {16 * 1280}')
        a(f's_mul_i32 s{sT + 14}, s{sN2}, 160')
        a(f's_add_u32 s{sT + 13}, s{sT + 13}, s{sT + 14}')
        hp = None
        for i in range(19):
            pend = []
            if i < 4:
                pend = bload(12 + i)
            elif 4 <= i < 7:
                pend = bload(12 + i)
            if i in (3, 9):
                a(f's_add_u32 s{sFL}, s{sFL}, 128')
                hp = self.poll_issue(vFT, 1, vFL, SWS, f's{sFL}')
            if i in (4, 10):
                self.poll_check(hp)
                self.stamp(11 if i == 4 else 12)
            if i == 15:
                for cb in range(5):
                    a(f'buffer_load_dwordx2 v[{vX + 2 * cb}:{vX + 2 * cb + 1}], v7, {SRD(SX)}, s{sT + 13} offen offset:{cb * 32}')
            for rho in range(4):
                for cb in range(5):
                    k, r = breg(i, cb)
                    a(f'v_mfma_f32_16x16x32_bf16 {acc(rho, cb)}, {R(k, r, 4)}, {R("v", abuf(i, rho), 4)}, {acc(rho, cb) if i else 0}')
                    if cb in (1, 3) and pend:
                        pend.pop(0)()
                if i + 4 < 19:
                    aload(i + 4, rho)
        self.stamp(13)
        for rho in range(3):
            a(f's_add_u32 s{sT + 14}, s{sW}, {rho + 1}')
            a(f's_and_b32 s{sT + 14}, s{sT + 14}, 3')
            a(f's_mul_i32 s{sT + 14}, s{sT + 14}, 15360')
            a(f's_add_u32 s{sT + 14}, s{sT + 14}, {L_R + rho * 5120}')
            a(f'v_add_u32 v{vAO + rho}, s{sT + 14}, v{vL16}')
            for cb in range(5):
                a(f'ds_write_b128 v{vAO + rho}, {acc(rho, cb)} offset:{cb * 1024}')
        a(f's_mul_i32 s{sT + 14}, s{sW}, 15360')
        a(f's_add_u32 s{sT + 14}, s{sT + 14}, {L_R}')
        a(f'v_add_u32 v{vAO + 3}, s{sT + 14}, v{vL16}')
        a.wait(lg_all=True)
        a('s_barrier')
        for cb in range(5):
            for rho in range(3):
                a(f'ds_read_b128 {acc(rho, cb)}, v{vAO + 3} offset:{rho * 5120 + cb * 1024}')
        for cb in range(5):
            d = acc0 + 60 + 4 * cb
            for rho in range(3):
                s_ = acc0 + 20 * rho + 4 * cb
                for i in (0, 2):
                    a(f'v_pk_add_f32 v[{d + i}:{d + i + 1}], v[{d + i}:{d + i + 1}], v[{s_ + i}:{s_ + i + 1}]')
            t = 22
            for i in range(2):
                a(f'v_lshlrev_b32 v{t + 2 * i}, 16, v{vX + 2 * cb + i}')
                a(f'v_and_b32 v{t + 2 * i + 1}, s{sMASK}, v{vX + 2 * cb + i}')
            for i in (0, 2):
                a(f'v_pk_add_f32 v[{d + i}:{d + i + 1}], v[{d + i}:{d + i + 1}], v[{t + i}:{t + i + 1}]')
            a(f'v_cvt_pk_bf16_f32 v{d}, v{d}, v{d + 1}')
            a(f'v_cvt_pk_bf16_f32 v{d + 1}, v{d + 2}, v{d + 3}')
            a(f'buffer_store_dwordx2 v[{d}:{d + 1}], v7, {SRD(SOUT)}, s{sT + 13} offen offset:{cb * 32}')
        if self.opt.get('probe'):
            pr = self.opt['probe']
            a.wait(vm_all=True)
            self.stamp(15)
            a(f's_cmp_eq_u32 s2, {pr[3]}')
            a('s_cbranch_scc0 L_end')
            a('s_sub_u32 s96, s100, s96')
            a(f's_mul_i32 s96, s96, {pr[2]}')
            a('s_min_u32 s96, s96, 100000')
            a('s_memrealtime s[100:101]')
            a.wait(lg_all=True)
            a.label('L_probe')
            a('s_memrealtime s[98:99]')
            a.wait(lg_all=True)
            a('s_sub_u32 s98, s98, s100')
            a('s_cmp_lt_u32 s98, s96')
            a('s_cbranch_scc1 L_probe')
        if self.stamps:
            self.stamp(14)
            a.wait(vm_all=True)
            self.stamp(15)
            a(f's_memrealtime s[{sST}:{sST + 1}]')
            a(f'v_writelane_b32 v{vSTAMP}, s{sST}, 16')
            a(f's_lshl_b32 s{sT}, s2, 2')
            a(f's_add_u32 s{sT}, s{sT}, s{sW}')
            a(f's_lshl_b32 s{sT}, s{sT}, 8')
            a(f's_add_u32 s{sT}, s{sT}, {WS_STAMP}')
            a(f'v_lshlrev_b32 v2, 2, v{vLANE}')
            a(f'buffer_store_dword v{vSTAMP}, v2, {SRD(SWS)}, s{sT} offen')

    def build(self):
        a = self.a
        self.prologue()
        snap = a.snapshot()
        self.role_h()
        a.wait(lg_all=True)
        a.settle()
        a('s_branch L_phase2')
        a.raw('.p2align 6')
        a.label('L_attn')
        a.restore(snap)
        self.role_attn()
        a.wait(lg_all=True)
        a.settle()
        a.label('L_phase2')
        a.vm = [('old', set())]
        self.phase2()
        a.label('L_end')
        a('s_endpgm')
        for l in self.slow:
            a.raw(l)
        a.label('L_codeend')
        a.raw('    s_endpgm')
        head = f'''; LayerNorm + linear attention block + SiLU MLP + residual, one persistent launch (generated by gen/gen.py)
; @launch grid=(256,1,1) block=(256,1,1) lds=163840
.amdgcn_target "amdgcn-amd-amdhsa--gfx950"
.text
.globl {KNAME}
.p2align 8
.type {KNAME},@function
{KNAME}:
'''
        tail = f'''.section .rodata,"a"
.p2align 6
.amdhsa_kernel {KNAME}
  .amdhsa_next_free_vgpr 512
  .amdhsa_next_free_sgpr 102
  .amdhsa_accum_offset 256
  .amdhsa_group_segment_fixed_size 0
  .amdhsa_kernarg_size 72
  .amdhsa_user_sgpr_count 2
  .amdhsa_user_sgpr_kernarg_segment_ptr 1
  .amdhsa_system_sgpr_workgroup_id_x 1
  .amdhsa_float_denorm_mode_32 3
.end_amdhsa_kernel
'''
        return head + a.text() + tail


if __name__ == '__main__':
    stamps = '--stamps' in sys.argv
    out = [x for x in sys.argv[1:] if not x.startswith('--')][0]
    opt = {}
    for x in sys.argv[1:]:
        if x.startswith('--') and '=' in x:
            k, v = x[2:].split('=')
            opt[k] = eval(v)
    g = Gen(stamps, opt)
    txt = g.build()
    open(out, 'w').write(txt)
    print(f'{out}: {len(txt)} bytes, auto nops {g.a.nops}, waits {g.a.waits}')
```
